```python
import torch

def _softmax(x, axis=-1):
    return torch.softmax(x, dim=axis)
def _gelu(x):
    return torch.nn.functional.gelu(x, approximate="tanh")
def _silu(x):
    return torch.nn.functional.silu(x)
def _sigmoid(x):
    return torch.sigmoid(x)
def _layernorm(x, axis=-1, eps=1e-5):
    m = x.mean(dim=axis, keepdim=True)
    v = x.var(dim=axis, keepdim=True, unbiased=False)
    return (x - m) / torch.sqrt(v + eps)
def _scatter_add(tgt, idx, src, axis=0):
    return tgt.clone().index_add_(axis, idx, src)
def _segment_sum(src, seg, n):
    out = torch.zeros((n,) + src.shape[1:], dtype=src.dtype)
    return out.index_add_(0, seg, src)
def _pad(x, pw):
    flat = tuple(v for pair in reversed(pw) for v in pair)
    return torch.nn.functional.pad(x, flat)

kernel_name = 'concat_heads__sliding_block_cached__sliding_block_cached__decode'

def setup_inputs():

    _w = (lambda a: (lambda t: t.to(torch.bfloat16) if t.is_floating_point() else t)(torch.as_tensor(a)))
    def _A_setup():
        B, Sq, D = 2, 1, 1024
        Hq, Hkv, Sk, Dh = 32, 4, 32768, 128
        assert Hq % Hkv == 0, (Hq, Hkv)
        return {
            "x": _w((lambda *s: torch.randn(*s, dtype=torch.bfloat16) * 0.8)(B, Sq, D)),
            "k_cache": _w((lambda *s: torch.randn(*s, dtype=torch.bfloat16) * 0.8)(B, Hkv, Sk, Dh)),
            "v_cache": _w((lambda *s: torch.randn(*s, dtype=torch.bfloat16) * 0.05)(B, Hkv, Sk, Dh)),
            "wq": _w((lambda *s: torch.randn(*s, dtype=torch.bfloat16) * 0.8)(D, Hq * Dh) * (D ** -0.5)),
            "wo": _w((lambda *s: torch.randn(*s, dtype=torch.bfloat16) * 0.05)(Hq * Dh, D) * ((Hq * Dh) ** -0.5)),
        }
    _A_in = _A_setup()

    def _B_setup():
        B, Sq, D = 2, 1, 1024
        Hq, Hkv, Sk, Dh = 32, 4, 32768, 128
        assert Hq % Hkv == 0, (Hq, Hkv)
        return {
            "x": _w((lambda *s: torch.randn(*s, dtype=torch.bfloat16) * 0.8)(B, Sq, D)),
            "k_cache": _w((lambda *s: torch.randn(*s, dtype=torch.bfloat16) * 0.8)(B, Hkv, Sk, Dh)),
            "v_cache": _w((lambda *s: torch.randn(*s, dtype=torch.bfloat16) * 0.05)(B, Hkv, Sk, Dh)),
            "wq": _w((lambda *s: torch.randn(*s, dtype=torch.bfloat16) * 0.8)(D, Hq * Dh) * (D ** -0.5)),
            "wo": _w((lambda *s: torch.randn(*s, dtype=torch.bfloat16) * 0.05)(Hq * Dh, D) * ((Hq * Dh) ** -0.5)),
        }
    _B_in = _B_setup()

    return {
        "A_x": _A_in["x"],
        "A_k_cache": _A_in["k_cache"],
        "A_v_cache": _A_in["v_cache"],
        "A_wq": _A_in["wq"],
        "A_wo": _A_in["wo"],
        "B_x": _B_in["x"],
        "B_k_cache": _B_in["k_cache"],
        "B_v_cache": _B_in["v_cache"],
        "B_wq": _B_in["wq"],
        "B_wo": _B_in["wo"],
    }

def reference(A_x, A_k_cache, A_v_cache, A_wq, A_wo, B_x, B_k_cache, B_v_cache, B_wq, B_wo):
    def _A_ref(x, k_cache, v_cache, wq, wo):
        B, Sq, D = x.shape
        Hq, Dh = 32, 128
        Hkv, Sk = k_cache.shape[1], k_cache.shape[2]
        W = min(4096, max(256, Sk // 4))
        rep = Hq // Hkv
        q = (lambda x, *d: x.permute(*d))((x @ wq).reshape(B, Sq, Hq, Dh), 0, 2, 1, 3)
        k = (lambda x, n, axis: torch.repeat_interleave(x, n, dim=axis))(k_cache[:, :, Sk - W:, :], rep, axis=1)
        v = (lambda x, n, axis: torch.repeat_interleave(x, n, dim=axis))(v_cache[:, :, Sk - W:, :], rep, axis=1)
        scores = torch.einsum("bhqd,bhkd->bhqk", q, k) * (Dh ** -0.5)
        p = _softmax(scores, axis=-1)
        o = torch.einsum("bhqk,bhkd->bhqd", p, v)
        return (lambda x, *d: x.permute(*d))(o, 0, 2, 1, 3).reshape(B, Sq, Hq * Dh) @ wo

    def _B_ref(x, k_cache, v_cache, wq, wo):
        B, Sq, D = x.shape
        Hq, Dh = 32, 128
        Hkv, Sk = k_cache.shape[1], k_cache.shape[2]
        W = min(4096, max(256, Sk // 4))
        rep = Hq // Hkv
        q = (lambda x, *d: x.permute(*d))((x @ wq).reshape(B, Sq, Hq, Dh), 0, 2, 1, 3)
        k = (lambda x, n, axis: torch.repeat_interleave(x, n, dim=axis))(k_cache[:, :, Sk - W:, :], rep, axis=1)
        v = (lambda x, n, axis: torch.repeat_interleave(x, n, dim=axis))(v_cache[:, :, Sk - W:, :], rep, axis=1)
        scores = torch.einsum("bhqd,bhkd->bhqk", q, k) * (Dh ** -0.5)
        p = _softmax(scores, axis=-1)
        o = torch.einsum("bhqk,bhkd->bhqd", p, v)
        return (lambda x, *d: x.permute(*d))(o, 0, 2, 1, 3).reshape(B, Sq, Hq * Dh) @ wo

    a = _A_ref(A_x, A_k_cache, A_v_cache, A_wq, A_wo)
    b = _B_ref(B_x, B_k_cache, B_v_cache, B_wq, B_wo)
    return torch.concatenate([a, b], axis=-1)
```

```python
import sys, math
KN = "concat_heads__sliding_block_cached__sliding_block_cached__decode_kernel"

WS_EPOCH = 0
WS_A2 = 4096
WS_ML = WS_A2 + 8 * 2 * 4096
WS_A1 = 1 << 17
WS_B = WS_A1 + (2 << 20)
WS_C = WS_B + (2 << 20)
WS_END = WS_C + (2 << 20)
WS_STAMP = 64 << 20
R0, R1, SC = 0, 65536, 131072
L_PROG, L_CWQ, L_CK, L_FQ, L_CMX, L_CP, L_CO = [SC + 4 * i for i in range(7)]
L_ZERO = SC + 256
L_O = SC + 512
L_Q = SC + 1024
L_MX = SC + 3328
L_LS = SC + 3584
L_P = SC + 4096
LDS_BYTES = SC + 8192

class G:
    def __init__(self):
        self.L = []; self.n = 0
    def __call__(self, s):
        for x in s.split("\n"):
            x = x.strip()
            if x: self.L.append(("" if x.endswith(":") else "    ") + x)
    def lab(self, p="L"):
        self.n += 1; return f"{p}_{self.n}"

def gen(depth=24, nt=True, stamps=False, spin_sleep=1):
    A = G()
    ntf = " nt" if nt else ""
    hdr = open("concat_heads__sliding_block_cached__sliding_block_cached__decode.s.ref").read().split("\n")
    head = [l for l in hdr if l.startswith(";") and "@launch" not in l and "Override" not in l and "grid=ceil" not in l]
    out = head + [f"; @launch grid=(256,1,1) block=(576,1,1) lds={LDS_BYTES}"]
    A('.amdgcn_target "amdgcn-amd-amdhsa--gfx950"\n.text')
    A(f".globl {KN}\n.p2align 8\n.type {KN},@function\n{KN}:")
    NST = 16
    stamp_regs = {}
    def stamp(i):
        if stamps:
            A(f"s_memrealtime s[{64+2*i}:{65+2*i}]")
    A("s_cmp_ge_u32 s2, 256\ns_cbranch_scc1 L_end")
    stamp(0)
    A("""s_lshr_b32 s34, s2, 7
    s_mul_i32 s36, s34, 40
    s_add_u32 s38, s0, s36
    s_addc_u32 s39, s1, 0
    s_load_dwordx8 s[4:11], s[38:39], 8
    s_load_dwordx2 s[12:13], s[0:1], 96
    v_readfirstlane_b32 s44, v0
    s_lshr_b32 s3, s2, 5
    s_and_b32 s33, s2, 31
    s_and_b32 s35, s3, 3
    s_lshr_b32 s44, s44, 6
    v_and_b32 v0, 63, v0
    s_cmp_lg_u32 s44, 0
    s_cbranch_scc1 L_cons""")
    A(f"""s_setprio 3
    v_lshlrev_b32 v1, 4, v0
    v_mov_b32 v20, 0
    v_mov_b32 v21, 0
    v_lshlrev_b32 v22, 3, v0
    v_add_u32 v22, {SC}, v22
    ds_write_b64 v22, v[20:21]""")
    for k in range(8):
        A(f"v_xor_b32 v{10+k}, {k<<5}, v1")
    for k in range(8):
        A(f"v_add_u32 v{2+k}, {(k&3)*7168}, v{10+k}")
    A("""s_lshr_b32 s46, s33, 1
    s_lshl_b32 s45, s46, 19
    s_lshl_b32 s47, s35, 11
    s_add_u32 s45, s45, s47
    s_and_b32 s48, s33, 1
    s_lshl_b32 s48, s48, 10
    s_add_u32 s45, s45, s48
    s_mov_b32 s18, 0x800000
    s_mov_b32 s19, 0x20000
    s_mov_b32 m0, 0
    s_waitcnt lgkmcnt(0)
    s_mov_b32 s16, s8
    s_mov_b32 s17, s9""")
    stamp(1)
    def wgroup(vbase, half, srd, so, step):
        for j in range(4):
            A(f"buffer_load_dwordx4 v{vbase+4*half+j}, s[{srd}:{srd+3}], {so} offen offset:{j*1024}{ntf} lds")
        A(f"s_add_u32 m0, m0, 4096\ns_add_u32 {so}, {so}, {step}")
    def kvgroup(srd, so):
        for j in range(4):
            A(f"buffer_load_dwordx4 v{18+(j&1)}, s[{srd}:{srd+3}], {so} offen offset:{j*1024}{ntf} lds")
        A(f"s_add_u32 m0, m0, 4096\ns_add_u32 {so}, {so}, 4096")
    def prog(n):
        A(f"s_waitcnt vmcnt({n})\nv_add_u32 v23, 4, v23\nds_write_b32 v24, v23")
    assert depth % 8 == 0
    for gidx in range(depth // 4):
        wgroup(2, gidx & 1, 16, "s45", 4 * 8192)
    for k in range(8):
        if k & 3: A(f"v_add_u32 v{10+k}, {(k&3)*1024}, v{10+k}")
    A(f"""v_lshrrev_b32 v18, 4, v0
    v_lshlrev_b32 v18, 5, v18
    v_xor_b32 v18, v18, v1
    v_xor_b32 v19, 0x80, v18
    v_mov_b32 v23, 0
    v_mov_b32 v24, {L_PROG}
    s_mov_b32 s20, s4
    s_mov_b32 s21, s5
    s_mov_b32 s22, 0x4000000
    s_mov_b32 s23, 0x20000
    s_mov_b32 s24, s6
    s_mov_b32 s25, s7
    s_mov_b32 s26, 0x4000000
    s_mov_b32 s27, 0x20000
    s_mov_b32 s28, s10
    s_mov_b32 s29, s11
    s_mov_b32 s30, 0x800000
    s_mov_b32 s31, 0x20000
    s_lshr_b32 s49, s33, 4
    s_lshl_b32 s49, s49, 25
    s_lshl_b32 s47, s35, 23
    s_add_u32 s49, s49, s47
    s_and_b32 s47, s33, 15
    s_lshl_b32 s47, s47, 16
    s_add_u32 s49, s49, s47
    s_add_u32 s49, s49, {28672*256}
    s_mov_b32 s50, s49
    s_lshl_b32 s51, s35, 4
    s_add_u32 s51, s51, s46
    s_lshl_b32 s51, s51, 17
    s_add_u32 s51, s51, s48
    s_barrier""")
    def loop(name, iters, body):
        A(f"s_mov_b32 s52, {iters}\n{name}:")
        body()
        A(f"s_sub_u32 s52, s52, 1\ns_cmp_lg_u32 s52, 0\ns_cbranch_scc1 {name}")
    def wait_free(addr):
        l = A.lab("L_fr")
        A(f"""v_mov_b32 v25, {addr}
        s_mov_b32 s53, 0x400000
        {l}:
        ds_read_b32 v26, v25
        s_sub_u32 s53, s53, 1
        s_cbranch_scc1 L_end
        s_waitcnt lgkmcnt(0)
        v_readfirstlane_b32 s54, v26
        s_cmp_lt_u32 s54, 8
        s_cbranch_scc1 {l}""")
    def wbody(vb, srd, so, step):
        def f():
            for h in range(2):
                prog(depth - 4); wgroup(vb, h, srd, so, step)
        return f
    def kvbody(srd, so):
        def f():
            prog(depth - 4); kvgroup(srd, so)
        return f
    loop("L_ld_wq", (64 - depth) // 8, wbody(2, 16, "s45", 4 * 8192))
    loop("L_ld_k", 16, kvbody(20, "s49"))
    stamp(2)
    wait_free(L_CWQ)
    A("s_mov_b32 m0, 0")
    loop("L_ld_v", 16, kvbody(24, "s50"))
    stamp(3)
    wait_free(L_CK)
    loop("L_ld_wo", 8, wbody(10, 28, "s51", 4 * 2048))
    stamp(4)
    for n in range(depth - 4, -1, -4):
        prog(n)
    stamp(5)
    if stamps:
        A(f"""s_waitcnt lgkmcnt(0)
        s_mul_i32 s54, s2, {NST*2*8}
        s_add_u32 s54, s54, {WS_STAMP}
        s_add_u32 s12, s12, s54
        s_addc_u32 s13, s13, 0
        v_mov_b32 v1, 0
        v_mov_b32 v3, 0""")
        for i in range(6):
            A(f"v_mov_b32 v2, s{64+2*i}\nglobal_store_dwordx2 v1, v[2:3], s[12:13] offset:{i*8}\ns_nop 1")
    A("s_endpgm")

    A("L_cons:")
    A("""s_load_dwordx2 s[14:15], s[38:39], 0
    s_load_dwordx2 s[40:41], s[0:1], 80
    s_sub_u32 s44, s44, 1
    s_lshl_b32 s45, s34, 8
    s_waitcnt lgkmcnt(0)
    s_load_dwordx2 s[42:43], s[12:13], s45""")
    A("""v_and_b32 v1, 15, v0
    v_lshrrev_b32 v2, 4, v0
    v_bfe_u32 v3, v0, 2, 2
    v_and_b32 v4, 3, v0""")
    A("""v_and_b32 v5, 1, v0
    v_lshlrev_b32 v5, 11, v5
    v_lshl_add_u32 v5, v2, 3, v5
    s_lshr_b32 s46, s33, 1
    s_lshl_b32 s47, s46, 7
    v_add_u32 v5, s47, v5
    global_load_dwordx2 v[64:65], v5, s[14:15]
    global_load_dwordx2 v[66:67], v5, s[14:15] offset:32
    global_load_dwordx2 v[68:69], v5, s[14:15] offset:64
    global_load_dwordx2 v[70:71], v5, s[14:15] offset:96""")
    def lanemask(f):
        m = 0
        for l in range(64):
            if f(l): m |= 1 << l
        return m
    for t in range(4):
        m = lanemask(lambda l: ((l & 7) >> 1) == t)
        A(f"s_mov_b32 s{20+2*t}, {hex(m & 0xffffffff)}\ns_mov_b32 s{21+2*t}, {hex(m >> 32)}")
    m = lanemask(lambda l: (l & 15) >= 8)
    A(f"s_mov_b32 s28, {hex(m & 0xffffffff)}\ns_mov_b32 s29, {hex(m >> 32)}")
    A("""v_lshl_add_u32 v7, v2, 2, v3
    v_and_b32 v6, 7, v7""")
    A("s_lshl_b32 s47, s44, 2")
    for t in range(4):
        A(f"""s_add_u32 s48, s47, {t}
        v_xor_b32 v{8+t}, s48, v6
        v_lshlrev_b32 v{8+t}, 5, v{8+t}
        v_lshl_add_u32 v{8+t}, v7, 10, v{8+t}
        v_lshl_add_u32 v{8+t}, v4, 3, v{8+t}""")
    A("""v_xor_b32 v12, s44, v6
    v_lshlrev_b32 v12, 5, v12
    v_lshl_add_u32 v12, v7, 8, v12
    v_lshl_add_u32 v12, v4, 3, v12""")
    A(f"""v_and_b32 v17, 7, v0
    v_lshlrev_b32 v17, 1, v17
    v_xor_b32 v17, v17, v2
    s_lshl_b32 s47, s44, 13
    s_add_u32 s47, s47, {R1}
    v_lshlrev_b32 v18, 8, v1
    v_add_u32 v18, s47, v18""")
    for c4 in range(4):
        A(f"v_xor_b32 v{13+c4}, {4*c4}, v17\nv_lshl_add_u32 v{13+c4}, v{13+c4}, 4, v18")
    A(f"v_mov_b32 v17, {SC}\nv_mov_b32 v18, 1")
    A(f"""v_bfe_u32 v19, v0, 2, 1
    v_lshlrev_b32 v19, 13, v19
    v_and_b32 v20, 1, v0
    v_lshl_add_u32 v19, v20, 8, v19
    v_bfe_u32 v20, v0, 1, 1
    v_lshl_add_u32 v19, v20, 7, v19
    v_lshl_add_u32 v19, v2, 5, v19
    v_bfe_u32 v21, v0, 3, 1
    v_lshl_add_u32 v19, v21, 4, v19
    s_and_b32 s48, s33, 1
    s_lshl_b32 s47, s48, 4
    s_lshl_b32 s49, s3, 5
    s_add_u32 s47, s47, s49
    s_lshl_b32 s49, s44, 1
    s_add_u32 s47, s47, s49
    s_lshl_b32 s47, s47, 13
    s_lshl_b32 s49, s46, 9
    s_add_u32 s47, s47, s49
    s_add_u32 s47, s47, {WS_A1}
    v_add_u32 v19, s47, v19""")
    A(f"""v_bfe_u32 v20, v0, 1, 2
    v_lshlrev_b32 v20, 14, v20
    v_lshrrev_b32 v22, 5, v0
    v_lshl_add_u32 v20, v22, 13, v20
    v_and_b32 v22, 1, v0
    v_lshl_add_u32 v20, v22, 6, v20
    v_and_b32 v22, 1, v2
    v_lshl_add_u32 v20, v22, 5, v20
    v_lshl_add_u32 v20, v21, 4, v20
    s_lshl_b32 s47, s34, 7
    s_lshl_b32 s49, s48, 6
    s_add_u32 s47, s47, s49
    s_lshl_b32 s49, s44, 3
    s_add_u32 s47, s47, s49
    s_lshl_b32 s47, s47, 13
    s_lshl_b32 s49, s35, 4
    s_add_u32 s49, s49, s46
    s_lshl_b32 s49, s49, 7
    s_add_u32 s47, s47, s49
    s_add_u32 s47, s47, {WS_C}
    v_add_u32 v20, s47, v20""")
    A(f"""v_and_b32 v22, 7, v0
    v_lshlrev_b32 v22, 10, v22
    v_lshl_add_u32 v22, v2, 5, v22
    v_lshl_add_u32 v22, v21, 4, v22
    s_lshl_b32 s47, s2, 13
    s_lshl_b32 s49, s44, 7
    s_add_u32 s47, s47, s49
    s_add_u32 s47, s47, {WS_B}
    v_add_u32 v22, s47, v22""")
    A("""s_waitcnt lgkmcnt(0)
    s_add_u32 s42, s42, 0x7f4a7c15
    s_addc_u32 s43, s43, 0x9e3779b9
    s_barrier
    s_waitcnt vmcnt(0)""")
    for t in range(4):
        for ks in range(2):
            for r in range(4):
                A(f"v_cndmask_b32 v{32+(t*2+ks)*4+r}, 0, v{64+ks*4+r}, s[{20+2*t}:{21+2*t}]")
    def spin(off, need, sleep=spin_sleep):
        l = A.lab("L_sp")
        A(f"""s_mov_b32 s53, 0x400000
        {l}:
        ds_read_b32 v23, v17 offset:{off - SC}
        s_sub_u32 s53, s53, 1
        s_cbranch_scc1 L_end
        s_waitcnt lgkmcnt(0)
        v_readfirstlane_b32 s54, v23
        s_cmp_ge_i32 s54, {need}""")
        if sleep:
            l2 = A.lab("L_sd")
            A(f"s_cbranch_scc1 {l2}\ns_sleep {sleep}\ns_branch {l}\n{l2}:")
        else:
            A(f"s_cbranch_scc0 {l}")
    def bump(off):
        A(f"s_mov_b64 exec, 1\nds_add_u32 v17, v18 offset:{off - SC}\ns_mov_b64 exec, -1")
    def proj_reads(ks, dst):
        for t in range(4):
            for h in range(2):
                A(f"ds_read_b64_tr_b16 v[{dst+t*4+h*2}:{dst+t*4+h*2+1}], v{8+t} offset:{ks*32768+h*16384}")
    def proj_mfma(ks, src, opb, acc):
        for t in range(4):
            if t < 3: A(f"s_waitcnt lgkmcnt({6-2*t})")
            else: A("s_waitcnt lgkmcnt(0)")
            c = "0" if (ks == 0 and t == 0) else f"v[{acc}:{acc+3}]"
            A(f"v_mfma_f32_16x16x32_bf16 v[{acc}:{acc+3}], v[{src+t*4}:{src+t*4+3}], v[{opb+(t*2+ks)*4}:{opb+(t*2+ks)*4+3}], {c}")
    def publish(acc, voff):
        A(f"""v_mov_b32 v30, s42
        v_mov_b32 v31, s43
        s_nop 5
        v_cndmask_b32 v28, v{acc}, v{acc+2}, s[28:29]
        v_cndmask_b32 v29, v{acc+1}, v{acc+3}, s[28:29]
        global_store_dwordx4 {voff}, v[28:31], s[12:13] sc1""")
    def gather(loads, sleep=0):
        l = A.lab("L_g");
        A(f"s_mov_b32 s53, 0x40000\n{l}:")
        for (d, vo, imm) in loads:
            A(f"global_load_dwordx4 v[{d}:{d+3}], {vo}, s[12:13] offset:{imm} sc1")
        A("s_sub_u32 s53, s53, 1\ns_cbranch_scc1 L_end")
        n = len(loads)
        for i, (d, vo, imm) in enumerate(loads):
            A(f"s_waitcnt vmcnt({n-1-i})")
            if i == 0:
                A(f"v_cmp_ne_u64 s[56:57], s[42:43], v[{d+2}:{d+3}]")
            else:
                A(f"v_cmp_ne_u64 vcc, s[42:43], v[{d+2}:{d+3}]\ns_or_b64 s[56:57], s[56:57], vcc")
        A("s_mov_b64 exec, s[56:57]")
        if sleep:
            l2 = A.lab("L_gd")
            A(f"s_cbranch_execz {l2}\ns_sleep {sleep}\ns_branch {l}\n{l2}:")
        else:
            A(f"s_cbranch_execnz {l}")
        A("s_mov_b64 exec, -1")

    spin(L_PROG, 32); proj_reads(0, 64); proj_mfma(0, 64, 32, 24)
    spin(L_PROG, 64); proj_reads(1, 80); proj_mfma(1, 80, 32, 24)
    bump(L_CWQ)
    publish(24, "v19")
    stamp(6)
    A("s_lshl_b32 s47, s44, 3\ns_add_u32 s47, s47, 72")
    spin(L_PROG, "s47")
    for tt in range(2):
        for c4 in range(4):
            A(f"ds_read_b128 v[{96+(tt*4+c4)*4}:{96+(tt*4+c4)*4+3}], v{13+c4} offset:{tt*4096}")
    A("s_waitcnt lgkmcnt(0)")
    bump(L_CK)
    A("s_cmp_lg_u32 s44, 0\ns_cbranch_scc1 L_noA")
    A(f"""s_lshl_b32 s47, s2, 13
    s_add_u32 s47, s47, {WS_A1 + 4096}
    v_lshlrev_b32 v24, 4, v0
    v_add_u32 v25, s47, v24""")
    gather([(32 + 4 * k, "v25", k * 1024 - 4096) for k in range(8)])
    stamp(7)
    for e in range(2):
        A(f"""v_add_f32 v{32+e}, v{32+e}, v{36+e}
        v_add_f32 v{40+e}, v{40+e}, v{44+e}
        v_add_f32 v{48+e}, v{48+e}, v{52+e}
        v_add_f32 v{56+e}, v{56+e}, v{60+e}""")
    for e in range(2):
        A(f"v_add_f32 v{32+e}, v{32+e}, v{40+e}\nv_add_f32 v{48+e}, v{48+e}, v{56+e}")
    for e in range(2):
        A(f"v_add_f32 v{32+e}, v{32+e}, v{48+e}")
    A("""v_mov_b32 v34, v32
    v_mov_b32 v35, v33
    s_nop 1
    v_permlane32_swap_b32 v32, v34
    v_permlane32_swap_b32 v33, v35
    s_nop 1
    v_add_f32 v32, v32, v34
    v_add_f32 v33, v33, v35
    v_cvt_pk_bf16_f32 v28, v32, v33
    s_nop 1
    v_mov_b32_dpp v29, v28 quad_perm:[1,1,3,3] row_mask:0xf bank_mask:0xf""")
    A(f"""v_bfe_u32 v26, v0, 4, 1
    v_lshlrev_b32 v26, 12, v26
    v_lshl_add_u32 v26, v1, 3, v26
    s_lshl_b32 s47, s3, 13
    s_lshl_b32 s49, s33, 7
    s_add_u32 s49, s49, s47
    s_add_u32 s49, s49, {WS_A2}
    v_add_u32 v26, s49, v26
    s_mov_b64 exec, 0x55555555
    global_store_dwordx4 v26, v[28:31], s[12:13] sc1
    s_mov_b64 exec, -1
    s_lshr_b32 s49, s33, 4
    s_lshl_b32 s49, s49, 12
    s_add_u32 s47, s47, s49
    s_add_u32 s47, s47, {WS_A2}
    v_add_u32 v25, s47, v24""")
    gather([(32 + 4 * k, "v25", k * 1024) for k in range(4)])
    A(f"""v_lshrrev_b32 v24, 5, v0
    v_mul_u32_u24 v24, 272, v24
    v_and_b32 v25, 31, v0
    v_lshl_add_u32 v24, v25, 3, v24
    v_add_u32 v24, {L_Q}, v24""")
    for k in range(4):
        A(f"ds_write_b64 v24, v[{32+4*k}:{33+4*k}] offset:{k*544}")
    bump(L_FQ)
    stamp(8)
    A("L_noA:")
    A(f"""v_and_b32 v5, 7, v0
    v_mul_u32_u24 v24, 272, v5
    v_lshl_add_u32 v24, v2, 4, v24
    v_add_u32 v24, {L_Q}, v24""")
    spin(L_FQ, 1)
    for c4 in range(4):
        A(f"ds_read_b128 v[{32+4*c4}:{35+4*c4}], v24 offset:{c4*64}")
    for c4 in range(4):
        A(f"s_waitcnt lgkmcnt({3-c4})")
        for tt in range(2):
            c = "0" if c4 == 0 else f"v[{48+4*tt}:{51+4*tt}]"
            A(f"v_mfma_f32_16x16x32_bf16 v[{48+4*tt}:{51+4*tt}], v[{96+(tt*4+c4)*4}:{96+(tt*4+c4)*4+3}], v[{32+4*c4}:{35+4*c4}], {c}")
    cscale = (128 ** -0.5) * math.log2(math.e)
    import struct
    cbits = struct.unpack("<I", struct.pack("<f", cscale))[0]
    A(f"""s_mov_b32 s47, {hex(cbits)}
    v_lshlrev_b32 v25, 5, v5
    v_add_u32 v25, {L_MX}, v25
    s_lshl_b32 s49, s44, 2
    v_add_u32 v26, s49, v25
    s_nop 3""")
    for r in range(4):
        A(f"v_cndmask_b32 v{48+r}, v{48+r}, v{52+r}, s[28:29]")
    for r in range(4):
        A(f"v_mul_f32 v{48+r}, s47, v{48+r}")
    def xreduce(op, v, t):
        A(f"""s_nop 1
        {op}_dpp v{v}, v{v}, v{v} row_ror:8 row_mask:0xf bank_mask:0xf
        v_mov_b32 v{t}, v{v}
        s_nop 1
        v_permlane16_swap_b32 v{v}, v{t}
        s_nop 1
        {op} v{v}, v{v}, v{t}
        v_mov_b32 v{t}, v{v}
        s_nop 1
        v_permlane32_swap_b32 v{v}, v{t}
        s_nop 1
        {op} v{v}, v{v}, v{t}""")
    A("v_max3_f32 v52, v48, v49, v50\nv_max_f32 v52, v52, v51")
    xreduce("v_max_f32", 52, 53)
    A("s_mov_b64 exec, 0xff\nds_write_b32 v26, v52\ns_mov_b64 exec, 1")
    A(f"ds_add_u32 v17, v18 offset:{L_CMX - SC}\ns_mov_b64 exec, -1")
    spin(L_CMX, 8, sleep=0)
    A("""ds_read_b128 v[56:59], v25
    ds_read_b128 v[60:63], v25 offset:16
    s_waitcnt lgkmcnt(0)
    v_max3_f32 v52, v56, v57, v58
    v_max3_f32 v53, v59, v60, v61
    v_max3_f32 v52, v52, v62, v63
    v_max_f32 v52, v52, v53""")
    for r in range(4):
        A(f"v_sub_f32 v{48+r}, v{48+r}, v52")
    for r in range(4):
        A(f"v_exp_f32 v{48+r}, v{48+r}")
    A(f"""v_lshlrev_b32 v24, 7, v2
    v_lshl_add_u32 v24, v5, 4, v24
    v_add_u32 v24, {L_P}, v24
    s_lshl_b32 s49, s44, 9
    v_lshl_add_u32 v56, v21, 3, v24
    v_add_u32 v56, s49, v56
    v_cvt_pk_bf16_f32 v54, v48, v49
    v_cvt_pk_bf16_f32 v55, v50, v51
    ds_write_b64 v56, v[54:55]
    v_add_f32 v48, v48, v49
    v_add_f32 v50, v50, v51
    v_add_f32 v48, v48, v50""")
    xreduce("v_add_f32", 48, 49)
    A(f"s_mov_b64 exec, 0xff\nds_write_b32 v26, v48 offset:{L_LS - L_MX}\ns_mov_b64 exec, 1")
    A(f"ds_add_u32 v17, v18 offset:{L_CP - SC}\ns_mov_b64 exec, -1")
    spin(L_CP, 8, sleep=0)
    for c8 in range(8):
        A(f"ds_read_b128 v[{96+4*c8}:{99+4*c8}], v24 offset:{c8*512}")
    stamp(9)
    A("s_cmp_lg_u32 s44, 7\ns_cbranch_scc1 L_noML")
    A(f"""ds_read_b128 v[56:59], v25 offset:{L_LS - L_MX}
    ds_read_b128 v[60:63], v25 offset:{L_LS - L_MX + 16}
    s_lshl_b32 s47, s2, 7
    s_add_u32 s47, s47, {WS_ML}
    v_lshlrev_b32 v26, 4, v0
    v_add_u32 v26, s47, v26
    v_mov_b32 v28, v52
    s_waitcnt lgkmcnt(0)
    v_add_f32 v56, v56, v57
    v_add_f32 v58, v58, v59
    v_add_f32 v60, v60, v61
    v_add_f32 v62, v62, v63
    v_add_f32 v56, v56, v58
    v_add_f32 v60, v60, v62
    v_add_f32 v29, v56, v60
    s_mov_b64 exec, 0xff
    global_store_dwordx4 v26, v[28:31], s[12:13] sc1
    s_mov_b64 exec, -1
    L_noML:""")
    steps = [(0, 4), (4, 6), (6, 7), (7, 8)]
    for (a, b) in steps:
        spin(L_PROG, 128 + 8 * b, sleep=(spin_sleep if b < 8 else 0))
        for c8 in range(a, b):
            for h in range(2):
                d = 64 + (c8 & 3) * 4 + h * 2
                A(f"ds_read_b64_tr_b16 v[{d}:{d+1}], v12 offset:{c8*8192+h*4096}")
        for c8 in range(a, b):
            A(f"s_waitcnt lgkmcnt({2*(b-1-c8)})")
            c = "0" if c8 == 0 else "v[24:27]"
            d = 64 + (c8 & 3) * 4
            A(f"v_mfma_f32_16x16x32_bf16 v[24:27], v[{d}:{d+3}], v[{96+4*c8}:{99+4*c8}], {c}")
    publish(24, "v22")
    stamp(10)
    A(f"""v_lshrrev_b32 v24, 3, v0
    v_lshlrev_b32 v25, 13, v24
    v_lshl_add_u32 v25, v5, 4, v25
    s_and_b32 s47, s44, 1
    s_lshl_b32 s47, s47, 4
    s_lshl_b32 s49, s3, 5
    s_add_u32 s47, s47, s49
    s_lshr_b32 s50, s33, 2
    s_lshl_b32 s49, s47, 13
    s_lshl_b32 s51, s50, 10
    s_add_u32 s49, s49, s51
    s_and_b32 s51, s46, 1
    s_lshl_b32 s51, s51, 9
    s_add_u32 s49, s49, s51
    s_lshr_b32 s51, s44, 1
    s_lshl_b32 s51, s51, 7
    s_add_u32 s49, s49, s51
    s_add_u32 s49, s49, {WS_B}
    v_add_u32 v25, s49, v25
    v_add_u32 v26, 0x10000, v25
    s_lshl_b32 s47, s47, 7
    s_lshl_b32 s50, s50, 4
    s_add_u32 s47, s47, s50
    s_add_u32 s47, s47, {WS_ML}
    v_lshlrev_b32 v24, 7, v24
    v_add_u32 v24, s47, v24""")
    gather([(32, "v24", 0), (36, "v24", 1024), (40, "v25", 0), (44, "v26", 0)])
    stamp(11)
    A("v_max_f32 v48, v32, v36")
    xreduce("v_max_f32", 48, 49)
    A("""v_sub_f32 v32, v32, v48
    v_sub_f32 v36, v36, v48
    v_exp_f32 v32, v32
    v_exp_f32 v36, v36
    s_nop 0
    v_mul_f32 v33, v33, v32
    v_mul_f32 v40, v40, v32
    v_mul_f32 v41, v41, v32
    v_fmac_f32 v33, v37, v36
    v_fmac_f32 v40, v44, v36
    v_fmac_f32 v41, v45, v36""")
    xreduce("v_add_f32", 33, 49); xreduce("v_add_f32", 40, 50); xreduce("v_add_f32", 41, 51)
    A(f"""v_rcp_f32 v33, v33
    v_bfe_u32 v24, v0, 1, 2
    v_lshlrev_b32 v24, 4, v24
    v_and_b32 v25, 1, v0
    v_lshl_add_u32 v24, v25, 2, v24
    s_and_b32 s47, s44, 1
    s_lshl_b32 s47, s47, 7
    s_lshr_b32 s49, s44, 2
    s_lshl_b32 s49, s49, 6
    s_add_u32 s47, s47, s49
    s_and_b32 s49, s44, 2
    s_lshl_b32 s49, s49, 2
    s_add_u32 s47, s47, s49
    s_add_u32 s47, s47, {L_O}
    v_add_u32 v24, s47, v24
    v_mul_f32 v40, v40, v33
    v_mul_f32 v41, v41, v33
    v_cvt_pk_bf16_f32 v40, v40, v41
    s_mov_b64 exec, 0xff
    ds_write_b32 v24, v40
    s_mov_b64 exec, 1
    ds_add_u32 v17, v18 offset:{L_CO - SC}
    s_mov_b64 exec, -1""")
    A(f"""v_lshlrev_b32 v24, 7, v25
    v_lshl_add_u32 v24, v2, 4, v24
    v_add_u32 v24, {L_O}, v24
    v_mov_b32 v25, {L_ZERO}""")
    for t in range(4):
        A(f"v_cndmask_b32 v{13+t}, v25, v24, s[{20+2*t}:{21+2*t}]\nv_add_u32 v{8+t}, {R1}, v{8+t}")
    spin(L_CO, 8, sleep=0)
    for t in range(4):
        for ks in range(2):
            d = 32 + (t * 2 + ks) * 4
            A(f"ds_read_b128 v[{d}:{d+3}], v{13+t} offset:{ks*64}")
    stamp(12)
    spin(L_PROG, 224); proj_reads(0, 64); proj_mfma(0, 64, 32, 24)
    spin(L_PROG, 256, sleep=0); proj_reads(1, 80); proj_mfma(1, 80, 32, 24)
    publish(24, "v20")
    stamp(13)
    A("s_cmp_lg_u32 s44, 0\ns_cbranch_scc1 L_end")
    A(f"""s_lshl_b32 s47, s2, 13
    s_add_u32 s47, s47, {WS_C + 4096}
    v_lshlrev_b32 v24, 4, v0
    v_add_u32 v25, s47, v24""")
    gather([(32 + 4 * k, "v25", k * 1024 - 4096) for k in range(8)])
    stamp(14)
    for e in range(2):
        A(f"""v_add_f32 v{32+e}, v{32+e}, v{36+e}
        v_add_f32 v{40+e}, v{40+e}, v{44+e}
        v_add_f32 v{48+e}, v{48+e}, v{52+e}
        v_add_f32 v{56+e}, v{56+e}, v{60+e}""")
    for e in range(2):
        A(f"v_add_f32 v{32+e}, v{32+e}, v{40+e}\nv_add_f32 v{48+e}, v{48+e}, v{56+e}")
    for e in range(2):
        A(f"v_add_f32 v{32+e}, v{32+e}, v{48+e}")
    xreduce("v_add_f32", 32, 34); xreduce("v_add_f32", 33, 35)
    A("""v_cvt_pk_bf16_f32 v32, v32, v33
    v_bfe_u32 v24, v0, 2, 1
    v_lshlrev_b32 v24, 12, v24
    v_lshl_add_u32 v24, v4, 2, v24
    s_lshl_b32 s47, s2, 4
    v_add_u32 v24, s47, v24
    s_mov_b64 exec, 0xff
    global_store_dword v24, v32, s[40:41]
    s_and_b32 s47, s2, 127
    s_cmp_lg_u32 s47, 0
    s_cbranch_scc1 L_noep
    s_mov_b64 exec, 1
    v_mov_b32 v24, s45
    global_store_dwordx2 v24, v[30:31], s[12:13]
    L_noep:""")
    stamp(15)
    if stamps:
        A(f"""s_mov_b64 exec, 1
        s_waitcnt lgkmcnt(0)
        s_mul_i32 s54, s2, {NST*2*8}
        s_add_u32 s54, s54, {WS_STAMP}
        s_add_u32 s12, s12, s54
        s_addc_u32 s13, s13, 0
        v_mov_b32 v1, 0
        v_mov_b32 v3, 0""")
        for i in range(6, 16):
            A(f"v_mov_b32 v2, s{64+2*i}\nglobal_store_dwordx2 v1, v[2:3], s[12:13] offset:{i*8}\ns_nop 1")
    A("L_end:\ns_endpgm")
    A(f""".section .rodata,"a"
    .p2align 6
    .amdhsa_kernel {KN}
    .amdhsa_next_free_vgpr 128
    .amdhsa_next_free_sgpr 102
    .amdhsa_accum_offset 128
    .amdhsa_group_segment_fixed_size 0
    .amdhsa_kernarg_size 104
    .amdhsa_user_sgpr_count 2
    .amdhsa_user_sgpr_kernarg_segment_ptr 1
    .amdhsa_system_sgpr_workgroup_id_x 1
    .amdhsa_float_denorm_mode_32 3
    .end_amdhsa_kernel""")
    return "\n".join(out + A.L) + "\n"

if __name__ == "__main__":
    import argparse
    ap = argparse.ArgumentParser()
    ap.add_argument("-o", default="concat_heads__sliding_block_cached__sliding_block_cached__decode.s")
    ap.add_argument("--depth", type=int, default=24)
    ap.add_argument("--nont", action="store_true")
    ap.add_argument("--stamps", action="store_true")
    a = ap.parse_args()
    open(a.o, "w").write(gen(depth=a.depth, nt=not a.nont, stamps=a.stamps))
```

```python
import sys, math
KN = "concat_heads__sliding_block_cached__sliding_block_cached__decode_kernel"

WS_EPOCH = 0
WS_A2 = 4096
WS_ML = WS_A2 + 8 * 2 * 4096
WS_A1 = 1 << 17
WS_B = WS_A1 + (2 << 20)
WS_C = WS_B + (2 << 20)
WS_END = WS_C + (2 << 20)
WS_STAMP = 64 << 20
R0, R1, SC = 0, 65536, 131072
L_PROG, L_CWQ, L_CK, L_FQ, L_CMX, L_CP, L_CO = [SC + 4 * i for i in range(7)]
L_ZERO = SC + 256
L_O = SC + 512
L_Q = SC + 1024
L_MX = SC + 3328
L_LS = SC + 3584
L_P = SC + 4096
LDS_BYTES = SC + 8192

class G:
    def __init__(self):
        self.L = []; self.n = 0
    def __call__(self, s):
        for x in s.split("\n"):
            x = x.strip()
            if x: self.L.append(("" if x.endswith(":") else "    ") + x)
    def lab(self, p="L"):
        self.n += 1; return f"{p}_{self.n}"

def gen(depth=24, nt=True, stamps=False, spin_sleep=1, diag=-1):
    A = G()
    ntf = " nt" if nt else ""
    hdr = open("concat_heads__sliding_block_cached__sliding_block_cached__decode.s.ref").read().split("\n")
    head = [l for l in hdr if l.startswith(";") and "@launch" not in l and "Override" not in l and "grid=ceil" not in l]
    out = head + [f"; @launch grid=(256,1,1) block=(576,1,1) lds={LDS_BYTES}"]
    A('.amdgcn_target "amdgcn-amd-amdhsa--gfx950"\n.text')
    A(f".globl {KN}\n.p2align 8\n.type {KN},@function\n{KN}:")
    NST = 16
    stamp_regs = {}
    def stamp(i):
        if stamps or i == diag:
            A(f"s_memrealtime s[{64+2*i}:{65+2*i}]")
    def diagspin(lo, hi):
        if lo <= diag <= hi:
            l = A.lab("L_dg")
            A(f"""s_waitcnt lgkmcnt(0)
            {l}:
            s_memrealtime s[60:61]
            s_waitcnt lgkmcnt(0)
            s_sub_u32 s60, s60, s{64+2*diag}
            s_cmp_lt_u32 s60, 4000
            s_cbranch_scc1 {l}""")
    A("s_cmp_ge_u32 s2, 256\ns_cbranch_scc1 L_end")
    stamp(0)
    A("""s_lshr_b32 s34, s2, 7
    s_mul_i32 s36, s34, 40
    s_add_u32 s38, s0, s36
    s_addc_u32 s39, s1, 0
    s_load_dwordx8 s[4:11], s[38:39], 8
    s_load_dwordx2 s[12:13], s[0:1], 96
    v_readfirstlane_b32 s44, v0
    s_lshr_b32 s3, s2, 5
    s_and_b32 s33, s2, 31
    s_and_b32 s35, s3, 3
    s_lshr_b32 s44, s44, 6
    v_and_b32 v0, 63, v0
    s_cmp_lg_u32 s44, 0
    s_cbranch_scc1 L_cons""")
    A(f"""s_setprio 3
    v_lshlrev_b32 v1, 4, v0
    v_mov_b32 v20, 0
    v_mov_b32 v21, 0
    v_lshlrev_b32 v22, 3, v0
    v_add_u32 v22, {SC}, v22
    ds_write_b64 v22, v[20:21]""")
    for k in range(8):
        A(f"v_xor_b32 v{10+k}, {k<<5}, v1")
    for k in range(8):
        A(f"v_add_u32 v{2+k}, {(k&3)*7168}, v{10+k}")
    A("""s_lshr_b32 s46, s33, 1
    s_lshl_b32 s45, s46, 19
    s_lshl_b32 s47, s35, 11
    s_add_u32 s45, s45, s47
    s_and_b32 s48, s33, 1
    s_lshl_b32 s48, s48, 10
    s_add_u32 s45, s45, s48
    s_mov_b32 s18, 0x800000
    s_mov_b32 s19, 0x20000
    s_mov_b32 m0, 0
    s_waitcnt lgkmcnt(0)
    s_mov_b32 s16, s8
    s_mov_b32 s17, s9""")
    stamp(1)
    def wgroup(vbase, half, srd, so, step):
        for j in range(4):
            A(f"buffer_load_dwordx4 v{vbase+4*half+j}, s[{srd}:{srd+3}], {so} offen offset:{j*1024}{ntf} lds")
        A(f"s_add_u32 m0, m0, 4096\ns_add_u32 {so}, {so}, {step}")
    def kvgroup(srd, so):
        for j in range(4):
            A(f"buffer_load_dwordx4 v{18+(j&1)}, s[{srd}:{srd+3}], {so} offen offset:{j*1024}{ntf} lds")
        A(f"s_add_u32 m0, m0, 4096\ns_add_u32 {so}, {so}, 4096")
    def prog(n):
        A(f"s_waitcnt vmcnt({n})\nv_add_u32 v23, 4, v23\nds_write_b32 v24, v23")
    assert depth % 8 == 0
    for gidx in range(depth // 4):
        wgroup(2, gidx & 1, 16, "s45", 4 * 8192)
    for k in range(8):
        if k & 3: A(f"v_add_u32 v{10+k}, {(k&3)*1024}, v{10+k}")
    A(f"""v_lshrrev_b32 v18, 4, v0
    v_lshlrev_b32 v18, 5, v18
    v_xor_b32 v18, v18, v1
    v_xor_b32 v19, 0x80, v18
    v_mov_b32 v23, 0
    v_mov_b32 v24, {L_PROG}
    s_mov_b32 s20, s4
    s_mov_b32 s21, s5
    s_mov_b32 s22, 0x4000000
    s_mov_b32 s23, 0x20000
    s_mov_b32 s24, s6
    s_mov_b32 s25, s7
    s_mov_b32 s26, 0x4000000
    s_mov_b32 s27, 0x20000
    s_mov_b32 s28, s10
    s_mov_b32 s29, s11
    s_mov_b32 s30, 0x800000
    s_mov_b32 s31, 0x20000
    s_lshr_b32 s49, s33, 4
    s_lshl_b32 s49, s49, 25
    s_lshl_b32 s47, s35, 23
    s_add_u32 s49, s49, s47
    s_and_b32 s47, s33, 15
    s_lshl_b32 s47, s47, 16
    s_add_u32 s49, s49, s47
    s_add_u32 s49, s49, {28672*256}
    s_mov_b32 s50, s49
    s_lshl_b32 s51, s35, 4
    s_add_u32 s51, s51, s46
    s_lshl_b32 s51, s51, 17
    s_add_u32 s51, s51, s48
    s_barrier""")
    def loop(name, iters, body):
        A(f"s_mov_b32 s52, {iters}\n{name}:")
        body()
        A(f"s_sub_u32 s52, s52, 1\ns_cmp_lg_u32 s52, 0\ns_cbranch_scc1 {name}")
    def wait_free(addr):
        l = A.lab("L_fr")
        A(f"""v_mov_b32 v25, {addr}
        s_mov_b32 s53, 0x400000
        {l}:
        ds_read_b32 v26, v25
        s_sub_u32 s53, s53, 1
        s_cbranch_scc1 L_end
        s_waitcnt lgkmcnt(0)
        v_readfirstlane_b32 s54, v26
        s_cmp_lt_u32 s54, 8
        s_cbranch_scc1 {l}""")
    def wbody(vb, srd, so, step):
        def f():
            for h in range(2):
                prog(depth - 4); wgroup(vb, h, srd, so, step)
        return f
    def kvbody(srd, so):
        def f():
            prog(depth - 4); kvgroup(srd, so)
        return f
    loop("L_ld_wq", (64 - depth) // 8, wbody(2, 16, "s45", 4 * 8192))
    loop("L_ld_k", 16, kvbody(20, "s49"))
    stamp(2)
    wait_free(L_CWQ)
    A("s_mov_b32 m0, 0")
    loop("L_ld_v", 16, kvbody(24, "s50"))
    stamp(3)
    wait_free(L_CK)
    loop("L_ld_wo", 8, wbody(10, 28, "s51", 4 * 2048))
    stamp(4)
    for n in range(depth - 4, -1, -4):
        prog(n)
    stamp(5)
    diagspin(0, 5)
    if stamps:
        A(f"""s_waitcnt lgkmcnt(0)
        s_mul_i32 s54, s2, {NST*2*8}
        s_add_u32 s54, s54, {WS_STAMP}
        s_add_u32 s12, s12, s54
        s_addc_u32 s13, s13, 0
        v_mov_b32 v1, 0
        v_mov_b32 v3, 0""")
        for i in range(6):
            A(f"v_mov_b32 v2, s{64+2*i}\nglobal_store_dwordx2 v1, v[2:3], s[12:13] offset:{i*8}\ns_nop 1")
    A("s_endpgm")

    A("L_cons:")
    A("""s_load_dwordx2 s[14:15], s[38:39], 0
    s_load_dwordx2 s[40:41], s[0:1], 80
    s_sub_u32 s44, s44, 1
    s_lshl_b32 s45, s34, 8
    s_waitcnt lgkmcnt(0)
    s_load_dwordx2 s[42:43], s[12:13], s45""")
    A("""v_and_b32 v1, 15, v0
    v_lshrrev_b32 v2, 4, v0
    v_bfe_u32 v3, v0, 2, 2
    v_and_b32 v4, 3, v0""")
    A("""v_and_b32 v5, 1, v0
    v_lshlrev_b32 v5, 11, v5
    v_lshl_add_u32 v5, v2, 3, v5
    s_lshr_b32 s46, s33, 1
    s_lshl_b32 s47, s46, 7
    v_add_u32 v5, s47, v5
    global_load_dwordx2 v[64:65], v5, s[14:15]
    global_load_dwordx2 v[66:67], v5, s[14:15] offset:32
    global_load_dwordx2 v[68:69], v5, s[14:15] offset:64
    global_load_dwordx2 v[70:71], v5, s[14:15] offset:96""")
    def lanemask(f):
        m = 0
        for l in range(64):
            if f(l): m |= 1 << l
        return m
    for t in range(4):
        m = lanemask(lambda l: ((l & 7) >> 1) == t)
        A(f"s_mov_b32 s{20+2*t}, {hex(m & 0xffffffff)}\ns_mov_b32 s{21+2*t}, {hex(m >> 32)}")
    m = lanemask(lambda l: (l & 15) >= 8)
    A(f"s_mov_b32 s28, {hex(m & 0xffffffff)}\ns_mov_b32 s29, {hex(m >> 32)}")
    A("""v_lshl_add_u32 v7, v2, 2, v3
    v_and_b32 v6, 7, v7""")
    A("s_lshl_b32 s47, s44, 2")
    for t in range(4):
        A(f"""s_add_u32 s48, s47, {t}
        v_xor_b32 v{8+t}, s48, v6
        v_lshlrev_b32 v{8+t}, 5, v{8+t}
        v_lshl_add_u32 v{8+t}, v7, 10, v{8+t}
        v_lshl_add_u32 v{8+t}, v4, 3, v{8+t}""")
    A("""v_xor_b32 v12, s44, v6
    v_lshlrev_b32 v12, 5, v12
    v_lshl_add_u32 v12, v7, 8, v12
    v_lshl_add_u32 v12, v4, 3, v12""")
    A(f"""v_and_b32 v17, 7, v0
    v_lshlrev_b32 v17, 1, v17
    v_xor_b32 v17, v17, v2
    s_lshl_b32 s47, s44, 13
    s_add_u32 s47, s47, {R1}
    v_lshlrev_b32 v18, 8, v1
    v_add_u32 v18, s47, v18""")
    for c4 in range(4):
        A(f"v_xor_b32 v{13+c4}, {4*c4}, v17\nv_lshl_add_u32 v{13+c4}, v{13+c4}, 4, v18")
    A(f"v_mov_b32 v17, {SC}\nv_mov_b32 v18, 1")
    A(f"""v_bfe_u32 v19, v0, 2, 1
    v_lshlrev_b32 v19, 13, v19
    v_and_b32 v20, 1, v0
    v_lshl_add_u32 v19, v20, 8, v19
    v_bfe_u32 v20, v0, 1, 1
    v_lshl_add_u32 v19, v20, 7, v19
    v_lshl_add_u32 v19, v2, 5, v19
    v_bfe_u32 v21, v0, 3, 1
    v_lshl_add_u32 v19, v21, 4, v19
    s_and_b32 s48, s33, 1
    s_lshl_b32 s47, s48, 4
    s_lshl_b32 s49, s3, 5
    s_add_u32 s47, s47, s49
    s_lshl_b32 s49, s44, 1
    s_add_u32 s47, s47, s49
    s_lshl_b32 s47, s47, 13
    s_lshl_b32 s49, s46, 9
    s_add_u32 s47, s47, s49
    s_add_u32 s47, s47, {WS_A1}
    v_add_u32 v19, s47, v19""")
    A(f"""v_bfe_u32 v20, v0, 1, 2
    v_lshlrev_b32 v20, 14, v20
    v_lshrrev_b32 v22, 5, v0
    v_lshl_add_u32 v20, v22, 13, v20
    v_and_b32 v22, 1, v0
    v_lshl_add_u32 v20, v22, 6, v20
    v_and_b32 v22, 1, v2
    v_lshl_add_u32 v20, v22, 5, v20
    v_lshl_add_u32 v20, v21, 4, v20
    s_lshl_b32 s47, s34, 7
    s_lshl_b32 s49, s48, 6
    s_add_u32 s47, s47, s49
    s_lshl_b32 s49, s44, 3
    s_add_u32 s47, s47, s49
    s_lshl_b32 s47, s47, 13
    s_lshl_b32 s49, s35, 4
    s_add_u32 s49, s49, s46
    s_lshl_b32 s49, s49, 7
    s_add_u32 s47, s47, s49
    s_add_u32 s47, s47, {WS_C}
    v_add_u32 v20, s47, v20""")
    A(f"""v_and_b32 v22, 7, v0
    v_lshlrev_b32 v22, 10, v22
    v_lshl_add_u32 v22, v2, 5, v22
    v_lshl_add_u32 v22, v21, 4, v22
    s_lshl_b32 s47, s2, 13
    s_lshl_b32 s49, s44, 7
    s_add_u32 s47, s47, s49
    s_add_u32 s47, s47, {WS_B}
    v_add_u32 v22, s47, v22""")
    A("""s_waitcnt lgkmcnt(0)
    s_add_u32 s42, s42, 0x7f4a7c15
    s_addc_u32 s43, s43, 0x9e3779b9
    s_barrier
    s_waitcnt vmcnt(0)""")
    for t in range(4):
        for ks in range(2):
            for r in range(4):
                A(f"v_cndmask_b32 v{32+(t*2+ks)*4+r}, 0, v{64+ks*4+r}, s[{20+2*t}:{21+2*t}]")
    def spin(off, need, sleep=spin_sleep):
        l = A.lab("L_sp")
        A(f"""s_mov_b32 s53, 0x400000
        {l}:
        ds_read_b32 v23, v17 offset:{off - SC}
        s_sub_u32 s53, s53, 1
        s_cbranch_scc1 L_end
        s_waitcnt lgkmcnt(0)
        v_readfirstlane_b32 s54, v23
        s_cmp_ge_i32 s54, {need}""")
        if sleep:
            l2 = A.lab("L_sd")
            A(f"s_cbranch_scc1 {l2}\ns_sleep {sleep}\ns_branch {l}\n{l2}:")
        else:
            A(f"s_cbranch_scc0 {l}")
    def bump(off):
        A(f"s_mov_b64 exec, 1\nds_add_u32 v17, v18 offset:{off - SC}\ns_mov_b64 exec, -1")
    def proj_reads(ks, dst):
        for t in range(4):
            for h in range(2):
                A(f"ds_read_b64_tr_b16 v[{dst+t*4+h*2}:{dst+t*4+h*2+1}], v{8+t} offset:{ks*32768+h*16384}")
    def proj_mfma(ks, src, opb, acc):
        for t in range(4):
            if t < 3: A(f"s_waitcnt lgkmcnt({6-2*t})")
            else: A("s_waitcnt lgkmcnt(0)")
            c = "0" if (ks == 0 and t == 0) else f"v[{acc}:{acc+3}]"
            A(f"v_mfma_f32_16x16x32_bf16 v[{acc}:{acc+3}], v[{src+t*4}:{src+t*4+3}], v[{opb+(t*2+ks)*4}:{opb+(t*2+ks)*4+3}], {c}")
    def publish(acc, voff):
        A(f"""v_mov_b32 v30, s42
        v_mov_b32 v31, s43
        s_nop 5
        v_cndmask_b32 v28, v{acc}, v{acc+2}, s[28:29]
        v_cndmask_b32 v29, v{acc+1}, v{acc+3}, s[28:29]
        global_store_dwordx4 {voff}, v[28:31], s[12:13] sc1""")
    def gather(loads, sleep=0):
        l = A.lab("L_g");
        A(f"s_mov_b32 s53, 0x40000\n{l}:")
        for (d, vo, imm) in loads:
            A(f"global_load_dwordx4 v[{d}:{d+3}], {vo}, s[12:13] offset:{imm} sc1")
        A("s_sub_u32 s53, s53, 1\ns_cbranch_scc1 L_end")
        n = len(loads)
        for i, (d, vo, imm) in enumerate(loads):
            A(f"s_waitcnt vmcnt({n-1-i})")
            if i == 0:
                A(f"v_cmp_ne_u64 s[56:57], s[42:43], v[{d+2}:{d+3}]")
            else:
                A(f"v_cmp_ne_u64 vcc, s[42:43], v[{d+2}:{d+3}]\ns_or_b64 s[56:57], s[56:57], vcc")
        A("s_mov_b64 exec, s[56:57]")
        if sleep:
            l2 = A.lab("L_gd")
            A(f"s_cbranch_execz {l2}\ns_sleep {sleep}\ns_branch {l}\n{l2}:")
        else:
            A(f"s_cbranch_execnz {l}")
        A("s_mov_b64 exec, -1")

    spin(L_PROG, 32); proj_reads(0, 64); proj_mfma(0, 64, 32, 24)
    spin(L_PROG, 64); proj_reads(1, 80); proj_mfma(1, 80, 32, 24)
    bump(L_CWQ)
    publish(24, "v19")
    stamp(6)
    A("s_lshl_b32 s47, s44, 3\ns_add_u32 s47, s47, 72")
    spin(L_PROG, "s47")
    for tt in range(2):
        for c4 in range(4):
            A(f"ds_read_b128 v[{96+(tt*4+c4)*4}:{96+(tt*4+c4)*4+3}], v{13+c4} offset:{tt*4096}")
    A("s_waitcnt lgkmcnt(0)")
    bump(L_CK)
    A("s_cmp_lg_u32 s44, 0\ns_cbranch_scc1 L_noA")
    A(f"""s_lshl_b32 s47, s2, 13
    s_add_u32 s47, s47, {WS_A1 + 4096}
    v_lshlrev_b32 v24, 4, v0
    v_add_u32 v25, s47, v24""")
    gather([(32 + 4 * k, "v25", k * 1024 - 4096) for k in range(8)])
    stamp(7)
    for e in range(2):
        A(f"""v_add_f32 v{32+e}, v{32+e}, v{36+e}
        v_add_f32 v{40+e}, v{40+e}, v{44+e}
        v_add_f32 v{48+e}, v{48+e}, v{52+e}
        v_add_f32 v{56+e}, v{56+e}, v{60+e}""")
    for e in range(2):
        A(f"v_add_f32 v{32+e}, v{32+e}, v{40+e}\nv_add_f32 v{48+e}, v{48+e}, v{56+e}")
    for e in range(2):
        A(f"v_add_f32 v{32+e}, v{32+e}, v{48+e}")
    A("""v_mov_b32 v34, v32
    v_mov_b32 v35, v33
    s_nop 1
    v_permlane32_swap_b32 v32, v34
    v_permlane32_swap_b32 v33, v35
    s_nop 1
    v_add_f32 v32, v32, v34
    v_add_f32 v33, v33, v35
    v_cvt_pk_bf16_f32 v28, v32, v33
    s_nop 1
    v_mov_b32_dpp v29, v28 quad_perm:[1,1,3,3] row_mask:0xf bank_mask:0xf""")
    A(f"""v_bfe_u32 v26, v0, 4, 1
    v_lshlrev_b32 v26, 12, v26
    v_lshl_add_u32 v26, v1, 3, v26
    s_lshl_b32 s47, s3, 13
    s_lshl_b32 s49, s33, 7
    s_add_u32 s49, s49, s47
    s_add_u32 s49, s49, {WS_A2}
    v_add_u32 v26, s49, v26
    s_mov_b64 exec, 0x55555555
    global_store_dwordx4 v26, v[28:31], s[12:13] sc1
    s_mov_b64 exec, -1
    s_lshr_b32 s49, s33, 4
    s_lshl_b32 s49, s49, 12
    s_add_u32 s47, s47, s49
    s_add_u32 s47, s47, {WS_A2}
    v_add_u32 v25, s47, v24""")
    gather([(32 + 4 * k, "v25", k * 1024) for k in range(4)])
    A(f"""v_lshrrev_b32 v24, 5, v0
    v_mul_u32_u24 v24, 272, v24
    v_and_b32 v25, 31, v0
    v_lshl_add_u32 v24, v25, 3, v24
    v_add_u32 v24, {L_Q}, v24""")
    for k in range(4):
        A(f"ds_write_b64 v24, v[{32+4*k}:{33+4*k}] offset:{k*544}")
    bump(L_FQ)
    stamp(8)
    A("L_noA:")
    A(f"""v_and_b32 v5, 7, v0
    v_mul_u32_u24 v24, 272, v5
    v_lshl_add_u32 v24, v2, 4, v24
    v_add_u32 v24, {L_Q}, v24""")
    spin(L_FQ, 1)
    for c4 in range(4):
        A(f"ds_read_b128 v[{32+4*c4}:{35+4*c4}], v24 offset:{c4*64}")
    for c4 in range(4):
        A(f"s_waitcnt lgkmcnt({3-c4})")
        for tt in range(2):
            c = "0" if c4 == 0 else f"v[{48+4*tt}:{51+4*tt}]"
            A(f"v_mfma_f32_16x16x32_bf16 v[{48+4*tt}:{51+4*tt}], v[{96+(tt*4+c4)*4}:{96+(tt*4+c4)*4+3}], v[{32+4*c4}:{35+4*c4}], {c}")
    cscale = (128 ** -0.5) * math.log2(math.e)
    import struct
    cbits = struct.unpack("<I", struct.pack("<f", cscale))[0]
    A(f"""s_mov_b32 s47, {hex(cbits)}
    v_lshlrev_b32 v25, 5, v5
    v_add_u32 v25, {L_MX}, v25
    s_lshl_b32 s49, s44, 2
    v_add_u32 v26, s49, v25
    s_nop 3""")
    for r in range(4):
        A(f"v_cndmask_b32 v{48+r}, v{48+r}, v{52+r}, s[28:29]")
    for r in range(4):
        A(f"v_mul_f32 v{48+r}, s47, v{48+r}")
    def xreduce(op, v, t):
        A(f"""s_nop 1
        {op}_dpp v{v}, v{v}, v{v} row_ror:8 row_mask:0xf bank_mask:0xf
        v_mov_b32 v{t}, v{v}
        s_nop 1
        v_permlane16_swap_b32 v{v}, v{t}
        s_nop 1
        {op} v{v}, v{v}, v{t}
        v_mov_b32 v{t}, v{v}
        s_nop 1
        v_permlane32_swap_b32 v{v}, v{t}
        s_nop 1
        {op} v{v}, v{v}, v{t}""")
    A("v_max3_f32 v52, v48, v49, v50\nv_max_f32 v52, v52, v51")
    xreduce("v_max_f32", 52, 53)
    A("s_mov_b64 exec, 0xff\nds_write_b32 v26, v52\ns_mov_b64 exec, 1")
    A(f"ds_add_u32 v17, v18 offset:{L_CMX - SC}\ns_mov_b64 exec, -1")
    spin(L_CMX, 8, sleep=0)
    A("""ds_read_b128 v[56:59], v25
    ds_read_b128 v[60:63], v25 offset:16
    s_waitcnt lgkmcnt(0)
    v_max3_f32 v52, v56, v57, v58
    v_max3_f32 v53, v59, v60, v61
    v_max3_f32 v52, v52, v62, v63
    v_max_f32 v52, v52, v53""")
    for r in range(4):
        A(f"v_sub_f32 v{48+r}, v{48+r}, v52")
    for r in range(4):
        A(f"v_exp_f32 v{48+r}, v{48+r}")
    A(f"""v_lshlrev_b32 v24, 7, v2
    v_lshl_add_u32 v24, v5, 4, v24
    v_add_u32 v24, {L_P}, v24
    s_lshl_b32 s49, s44, 9
    v_lshl_add_u32 v56, v21, 3, v24
    v_add_u32 v56, s49, v56
    v_cvt_pk_bf16_f32 v54, v48, v49
    v_cvt_pk_bf16_f32 v55, v50, v51
    ds_write_b64 v56, v[54:55]
    v_add_f32 v48, v48, v49
    v_add_f32 v50, v50, v51
    v_add_f32 v48, v48, v50""")
    xreduce("v_add_f32", 48, 49)
    A(f"s_mov_b64 exec, 0xff\nds_write_b32 v26, v48 offset:{L_LS - L_MX}\ns_mov_b64 exec, 1")
    A(f"ds_add_u32 v17, v18 offset:{L_CP - SC}\ns_mov_b64 exec, -1")
    spin(L_CP, 8, sleep=0)
    for c8 in range(8):
        A(f"ds_read_b128 v[{96+4*c8}:{99+4*c8}], v24 offset:{c8*512}")
    stamp(9)
    A("s_cmp_lg_u32 s44, 7\ns_cbranch_scc1 L_noML")
    A(f"""ds_read_b128 v[56:59], v25 offset:{L_LS - L_MX}
    ds_read_b128 v[60:63], v25 offset:{L_LS - L_MX + 16}
    s_lshl_b32 s47, s2, 7
    s_add_u32 s47, s47, {WS_ML}
    v_lshlrev_b32 v26, 4, v0
    v_add_u32 v26, s47, v26
    v_mov_b32 v28, v52
    s_waitcnt lgkmcnt(0)
    v_add_f32 v56, v56, v57
    v_add_f32 v58, v58, v59
    v_add_f32 v60, v60, v61
    v_add_f32 v62, v62, v63
    v_add_f32 v56, v56, v58
    v_add_f32 v60, v60, v62
    v_add_f32 v29, v56, v60
    s_mov_b64 exec, 0xff
    global_store_dwordx4 v26, v[28:31], s[12:13] sc1
    s_mov_b64 exec, -1
    L_noML:""")
    steps = [(0, 4), (4, 6), (6, 7), (7, 8)]
    for (a, b) in steps:
        spin(L_PROG, 128 + 8 * b, sleep=(spin_sleep if b < 8 else 0))
        for c8 in range(a, b):
            for h in range(2):
                d = 64 + (c8 & 3) * 4 + h * 2
                A(f"ds_read_b64_tr_b16 v[{d}:{d+1}], v12 offset:{c8*8192+h*4096}")
        for c8 in range(a, b):
            A(f"s_waitcnt lgkmcnt({2*(b-1-c8)})")
            c = "0" if c8 == 0 else "v[24:27]"
            d = 64 + (c8 & 3) * 4
            A(f"v_mfma_f32_16x16x32_bf16 v[24:27], v[{d}:{d+3}], v[{96+4*c8}:{99+4*c8}], {c}")
    publish(24, "v22")
    stamp(10)
    A(f"""v_lshrrev_b32 v24, 3, v0
    v_lshlrev_b32 v25, 13, v24
    v_lshl_add_u32 v25, v5, 4, v25
    s_and_b32 s47, s44, 1
    s_lshl_b32 s47, s47, 4
    s_lshl_b32 s49, s3, 5
    s_add_u32 s47, s47, s49
    s_lshr_b32 s50, s33, 2
    s_lshl_b32 s49, s47, 13
    s_lshl_b32 s51, s50, 10
    s_add_u32 s49, s49, s51
    s_and_b32 s51, s46, 1
    s_lshl_b32 s51, s51, 9
    s_add_u32 s49, s49, s51
    s_lshr_b32 s51, s44, 1
    s_lshl_b32 s51, s51, 7
    s_add_u32 s49, s49, s51
    s_add_u32 s49, s49, {WS_B}
    v_add_u32 v25, s49, v25
    v_add_u32 v26, 0x10000, v25
    s_lshl_b32 s47, s47, 7
    s_lshl_b32 s50, s50, 4
    s_add_u32 s47, s47, s50
    s_add_u32 s47, s47, {WS_ML}
    v_lshlrev_b32 v24, 7, v24
    v_add_u32 v24, s47, v24""")
    gather([(32, "v24", 0), (36, "v24", 1024), (40, "v25", 0), (44, "v26", 0)])
    stamp(11)
    A("v_max_f32 v48, v32, v36")
    xreduce("v_max_f32", 48, 49)
    A("""v_sub_f32 v32, v32, v48
    v_sub_f32 v36, v36, v48
    v_exp_f32 v32, v32
    v_exp_f32 v36, v36
    s_nop 0
    v_mul_f32 v33, v33, v32
    v_mul_f32 v40, v40, v32
    v_mul_f32 v41, v41, v32
    v_fmac_f32 v33, v37, v36
    v_fmac_f32 v40, v44, v36
    v_fmac_f32 v41, v45, v36""")
    xreduce("v_add_f32", 33, 49); xreduce("v_add_f32", 40, 50); xreduce("v_add_f32", 41, 51)
    A(f"""v_rcp_f32 v33, v33
    v_bfe_u32 v24, v0, 1, 2
    v_lshlrev_b32 v24, 4, v24
    v_and_b32 v25, 1, v0
    v_lshl_add_u32 v24, v25, 2, v24
    s_and_b32 s47, s44, 1
    s_lshl_b32 s47, s47, 7
    s_lshr_b32 s49, s44, 2
    s_lshl_b32 s49, s49, 6
    s_add_u32 s47, s47, s49
    s_and_b32 s49, s44, 2
    s_lshl_b32 s49, s49, 2
    s_add_u32 s47, s47, s49
    s_add_u32 s47, s47, {L_O}
    v_add_u32 v24, s47, v24
    v_mul_f32 v40, v40, v33
    v_mul_f32 v41, v41, v33
    v_cvt_pk_bf16_f32 v40, v40, v41
    s_mov_b64 exec, 0xff
    ds_write_b32 v24, v40
    s_mov_b64 exec, 1
    ds_add_u32 v17, v18 offset:{L_CO - SC}
    s_mov_b64 exec, -1""")
    A(f"""v_lshlrev_b32 v24, 7, v25
    v_lshl_add_u32 v24, v2, 4, v24
    v_add_u32 v24, {L_O}, v24
    v_mov_b32 v25, {L_ZERO}""")
    for t in range(4):
        A(f"v_cndmask_b32 v{13+t}, v25, v24, s[{20+2*t}:{21+2*t}]\nv_add_u32 v{8+t}, {R1}, v{8+t}")
    spin(L_CO, 8, sleep=0)
    for t in range(4):
        for ks in range(2):
            d = 32 + (t * 2 + ks) * 4
            A(f"ds_read_b128 v[{d}:{d+3}], v{13+t} offset:{ks*64}")
    stamp(12)
    spin(L_PROG, 224); proj_reads(0, 64); proj_mfma(0, 64, 32, 24)
    spin(L_PROG, 256, sleep=0); proj_reads(1, 80); proj_mfma(1, 80, 32, 24)
    publish(24, "v20")
    stamp(13)
    A("s_cmp_lg_u32 s44, 0\ns_cbranch_scc1 L_end")
    A(f"""s_lshl_b32 s47, s2, 13
    s_add_u32 s47, s47, {WS_C + 4096}
    v_lshlrev_b32 v24, 4, v0
    v_add_u32 v25, s47, v24""")
    gather([(32 + 4 * k, "v25", k * 1024 - 4096) for k in range(8)])
    stamp(14)
    for e in range(2):
        A(f"""v_add_f32 v{32+e}, v{32+e}, v{36+e}
        v_add_f32 v{40+e}, v{40+e}, v{44+e}
        v_add_f32 v{48+e}, v{48+e}, v{52+e}
        v_add_f32 v{56+e}, v{56+e}, v{60+e}""")
    for e in range(2):
        A(f"v_add_f32 v{32+e}, v{32+e}, v{40+e}\nv_add_f32 v{48+e}, v{48+e}, v{56+e}")
    for e in range(2):
        A(f"v_add_f32 v{32+e}, v{32+e}, v{48+e}")
    xreduce("v_add_f32", 32, 34); xreduce("v_add_f32", 33, 35)
    A("""v_cvt_pk_bf16_f32 v32, v32, v33
    v_bfe_u32 v24, v0, 2, 1
    v_lshlrev_b32 v24, 12, v24
    v_lshl_add_u32 v24, v4, 2, v24
    s_lshl_b32 s47, s2, 4
    v_add_u32 v24, s47, v24
    s_mov_b64 exec, 0xff
    global_store_dword v24, v32, s[40:41]
    s_and_b32 s47, s2, 127
    s_cmp_lg_u32 s47, 0
    s_cbranch_scc1 L_noep
    s_mov_b64 exec, 1
    v_mov_b32 v24, s45
    global_store_dwordx2 v24, v[30:31], s[12:13]
    L_noep:""")
    stamp(15)
    diagspin(6, 15)
    if stamps:
        A(f"""s_mov_b64 exec, 1
        s_waitcnt lgkmcnt(0)
        s_mul_i32 s54, s2, {NST*2*8}
        s_add_u32 s54, s54, {WS_STAMP}
        s_add_u32 s12, s12, s54
        s_addc_u32 s13, s13, 0
        v_mov_b32 v1, 0
        v_mov_b32 v3, 0""")
        for i in range(6, 16):
            A(f"v_mov_b32 v2, s{64+2*i}\nglobal_store_dwordx2 v1, v[2:3], s[12:13] offset:{i*8}\ns_nop 1")
    A("L_end:\ns_endpgm")
    A(f""".section .rodata,"a"
    .p2align 6
    .amdhsa_kernel {KN}
    .amdhsa_next_free_vgpr 128
    .amdhsa_next_free_sgpr 102
    .amdhsa_accum_offset 128
    .amdhsa_group_segment_fixed_size 0
    .amdhsa_kernarg_size 104
    .amdhsa_user_sgpr_count 2
    .amdhsa_user_sgpr_kernarg_segment_ptr 1
    .amdhsa_system_sgpr_workgroup_id_x 1
    .amdhsa_float_denorm_mode_32 3
    .end_amdhsa_kernel""")
    return "\n".join(out + A.L) + "\n"

if __name__ == "__main__":
    import argparse
    ap = argparse.ArgumentParser()
    ap.add_argument("-o", default="concat_heads__sliding_block_cached__sliding_block_cached__decode.s")
    ap.add_argument("--depth", type=int, default=24)
    ap.add_argument("--nont", action="store_true")
    ap.add_argument("--stamps", action="store_true")
    ap.add_argument("--diag", type=int, default=-1)
    a = ap.parse_args()
    open(a.o, "w").write(gen(depth=a.depth, nt=not a.nont, stamps=a.stamps, diag=a.diag))
```

```python
import sys, math
KN = "concat_heads__sliding_block_cached__sliding_block_cached__decode_kernel"

WS_EPOCH = 0
WS_A2 = 4096
WS_ML = WS_A2 + 8 * 2 * 4096
WS_A1 = 1 << 17
WS_B = WS_A1 + (2 << 20)
WS_C = WS_B + (2 << 20)
WS_END = WS_C + (2 << 20)
WS_STAMP = 64 << 20
R0, R1, SC = 0, 65536, 131072
L_PROG, L_CWQ, L_CK, L_FQ, L_CMX, L_CP, L_CO = [SC + 4 * i for i in range(7)]
L_ZERO = SC + 256
L_O = SC + 512
L_Q = SC + 1024
L_MX = SC + 3328
L_LS = SC + 3584
L_P = SC + 4096
LDS_BYTES = SC + 8192

class G:
    def __init__(self):
        self.L = []; self.n = 0
    def __call__(self, s):
        for x in s.split("\n"):
            x = x.strip()
            if x: self.L.append(("" if x.endswith(":") else "    ") + x)
    def lab(self, p="L"):
        self.n += 1; return f"{p}_{self.n}"

def gen(depth=24, nt=True, stamps=False, spin_sleep=1, diag=-1, diagwg=-1, diagt=4000):
    A = G()
    ntf = " nt" if nt else ""
    hdr = open("concat_heads__sliding_block_cached__sliding_block_cached__decode.s.ref").read().split("\n")
    head = [l for l in hdr if l.startswith(";") and "@launch" not in l and "Override" not in l and "grid=ceil" not in l]
    out = head + [f"; @launch grid=(256,1,1) block=(576,1,1) lds={LDS_BYTES}"]
    A('.amdgcn_target "amdgcn-amd-amdhsa--gfx950"\n.text')
    A(f".globl {KN}\n.p2align 8\n.type {KN},@function\n{KN}:")
    NST = 16
    stamp_regs = {}
    def stamp(i):
        if stamps or i == diag:
            A(f"s_memrealtime s[{64+2*i}:{65+2*i}]")
    def diagspin(lo, hi):
        if lo <= diag <= hi:
            l = A.lab("L_dg")
            if diagwg >= 0: A(f"s_cmp_lg_u32 s2, {diagwg}\ns_cbranch_scc1 L_end")
            A(f"""s_waitcnt lgkmcnt(0)
            {l}:
            s_memrealtime s[60:61]
            s_waitcnt lgkmcnt(0)
            s_sub_u32 s60, s60, s{64+2*diag}
            s_cmp_lt_u32 s60, {diagt}
            s_cbranch_scc1 {l}""")
    A("s_cmp_ge_u32 s2, 256\ns_cbranch_scc1 L_end")
    stamp(0)
    A("""s_lshr_b32 s34, s2, 7
    s_mul_i32 s36, s34, 40
    s_add_u32 s38, s0, s36
    s_addc_u32 s39, s1, 0
    s_load_dwordx8 s[4:11], s[38:39], 8
    s_load_dwordx2 s[12:13], s[0:1], 96
    v_readfirstlane_b32 s44, v0
    s_lshr_b32 s3, s2, 5
    s_and_b32 s33, s2, 31
    s_and_b32 s35, s3, 3
    s_lshr_b32 s44, s44, 6
    v_and_b32 v0, 63, v0
    s_cmp_lg_u32 s44, 0
    s_cbranch_scc1 L_cons""")
    A(f"""s_setprio 3
    v_lshlrev_b32 v1, 4, v0
    v_mov_b32 v20, 0
    v_mov_b32 v21, 0
    v_lshlrev_b32 v22, 3, v0
    v_add_u32 v22, {SC}, v22
    ds_write_b64 v22, v[20:21]""")
    for k in range(8):
        A(f"v_xor_b32 v{10+k}, {k<<5}, v1")
    for k in range(8):
        A(f"v_add_u32 v{2+k}, {(k&3)*7168}, v{10+k}")
    A("""s_lshr_b32 s46, s33, 1
    s_lshl_b32 s45, s46, 19
    s_lshl_b32 s47, s35, 11
    s_add_u32 s45, s45, s47
    s_and_b32 s48, s33, 1
    s_lshl_b32 s48, s48, 10
    s_add_u32 s45, s45, s48
    s_mov_b32 s18, 0x800000
    s_mov_b32 s19, 0x20000
    s_mov_b32 m0, 0
    s_waitcnt lgkmcnt(0)
    s_mov_b32 s16, s8
    s_mov_b32 s17, s9""")
    stamp(1)
    def wgroup(vbase, half, srd, so, step):
        for j in range(4):
            A(f"buffer_load_dwordx4 v{vbase+4*half+j}, s[{srd}:{srd+3}], {so} offen offset:{j*1024}{ntf} lds")
        A(f"s_add_u32 m0, m0, 4096\ns_add_u32 {so}, {so}, {step}")
    def kvgroup(srd, so):
        for j in range(4):
            A(f"buffer_load_dwordx4 v{18+(j&1)}, s[{srd}:{srd+3}], {so} offen offset:{j*1024}{ntf} lds")
        A(f"s_add_u32 m0, m0, 4096\ns_add_u32 {so}, {so}, 4096")
    def prog(n):
        A(f"s_waitcnt vmcnt({n})\nv_add_u32 v23, 4, v23\nds_write_b32 v24, v23")
    assert depth % 8 == 0
    for gidx in range(depth // 4):
        wgroup(2, gidx & 1, 16, "s45", 4 * 8192)
    for k in range(8):
        if k & 3: A(f"v_add_u32 v{10+k}, {(k&3)*1024}, v{10+k}")
    A(f"""v_lshrrev_b32 v18, 4, v0
    v_lshlrev_b32 v18, 5, v18
    v_xor_b32 v18, v18, v1
    v_xor_b32 v19, 0x80, v18
    v_mov_b32 v23, 0
    v_mov_b32 v24, {L_PROG}
    s_mov_b32 s20, s4
    s_mov_b32 s21, s5
    s_mov_b32 s22, 0x4000000
    s_mov_b32 s23, 0x20000
    s_mov_b32 s24, s6
    s_mov_b32 s25, s7
    s_mov_b32 s26, 0x4000000
    s_mov_b32 s27, 0x20000
    s_mov_b32 s28, s10
    s_mov_b32 s29, s11
    s_mov_b32 s30, 0x800000
    s_mov_b32 s31, 0x20000
    s_lshr_b32 s49, s33, 4
    s_lshl_b32 s49, s49, 25
    s_lshl_b32 s47, s35, 23
    s_add_u32 s49, s49, s47
    s_and_b32 s47, s33, 15
    s_lshl_b32 s47, s47, 16
    s_add_u32 s49, s49, s47
    s_add_u32 s49, s49, {28672*256}
    s_mov_b32 s50, s49
    s_lshl_b32 s51, s35, 4
    s_add_u32 s51, s51, s46
    s_lshl_b32 s51, s51, 17
    s_add_u32 s51, s51, s48
    s_barrier""")
    def loop(name, iters, body):
        A(f"s_mov_b32 s52, {iters}\n{name}:")
        body()
        A(f"s_sub_u32 s52, s52, 1\ns_cmp_lg_u32 s52, 0\ns_cbranch_scc1 {name}")
    def wait_free(addr):
        l = A.lab("L_fr")
        A(f"""v_mov_b32 v25, {addr}
        s_mov_b32 s53, 0x400000
        {l}:
        ds_read_b32 v26, v25
        s_sub_u32 s53, s53, 1
        s_cbranch_scc1 L_end
        s_waitcnt lgkmcnt(0)
        v_readfirstlane_b32 s54, v26
        s_cmp_lt_u32 s54, 8
        s_cbranch_scc1 {l}""")
    def wbody(vb, srd, so, step):
        def f():
            for h in range(2):
                prog(depth - 4); wgroup(vb, h, srd, so, step)
        return f
    def kvbody(srd, so):
        def f():
            prog(depth - 4); kvgroup(srd, so)
        return f
    loop("L_ld_wq", (64 - depth) // 8, wbody(2, 16, "s45", 4 * 8192))
    loop("L_ld_k", 16, kvbody(20, "s49"))
    stamp(2)
    wait_free(L_CWQ)
    A("s_mov_b32 m0, 0")
    loop("L_ld_v", 16, kvbody(24, "s50"))
    stamp(3)
    wait_free(L_CK)
    loop("L_ld_wo", 8, wbody(10, 28, "s51", 4 * 2048))
    stamp(4)
    for n in range(depth - 4, -1, -4):
        prog(n)
    stamp(5)
    diagspin(0, 5)
    if stamps:
        A(f"""s_waitcnt lgkmcnt(0)
        s_mul_i32 s54, s2, {NST*2*8}
        s_add_u32 s54, s54, {WS_STAMP}
        s_add_u32 s12, s12, s54
        s_addc_u32 s13, s13, 0
        v_mov_b32 v1, 0
        v_mov_b32 v3, 0""")
        for i in range(6):
            A(f"v_mov_b32 v2, s{64+2*i}\nglobal_store_dwordx2 v1, v[2:3], s[12:13] offset:{i*8}\ns_nop 1")
    A("s_endpgm")

    A("L_cons:")
    A("""s_load_dwordx2 s[14:15], s[38:39], 0
    s_load_dwordx2 s[40:41], s[0:1], 80
    s_sub_u32 s44, s44, 1
    s_lshl_b32 s45, s34, 8
    s_waitcnt lgkmcnt(0)
    s_load_dwordx2 s[42:43], s[12:13], s45""")
    A("""v_and_b32 v1, 15, v0
    v_lshrrev_b32 v2, 4, v0
    v_bfe_u32 v3, v0, 2, 2
    v_and_b32 v4, 3, v0""")
    A("""v_and_b32 v5, 1, v0
    v_lshlrev_b32 v5, 11, v5
    v_lshl_add_u32 v5, v2, 3, v5
    s_lshr_b32 s46, s33, 1
    s_lshl_b32 s47, s46, 7
    v_add_u32 v5, s47, v5
    global_load_dwordx2 v[64:65], v5, s[14:15]
    global_load_dwordx2 v[66:67], v5, s[14:15] offset:32
    global_load_dwordx2 v[68:69], v5, s[14:15] offset:64
    global_load_dwordx2 v[70:71], v5, s[14:15] offset:96""")
    def lanemask(f):
        m = 0
        for l in range(64):
            if f(l): m |= 1 << l
        return m
    for t in range(4):
        m = lanemask(lambda l: ((l & 7) >> 1) == t)
        A(f"s_mov_b32 s{20+2*t}, {hex(m & 0xffffffff)}\ns_mov_b32 s{21+2*t}, {hex(m >> 32)}")
    m = lanemask(lambda l: (l & 15) >= 8)
    A(f"s_mov_b32 s28, {hex(m & 0xffffffff)}\ns_mov_b32 s29, {hex(m >> 32)}")
    A("""v_lshl_add_u32 v7, v2, 2, v3
    v_and_b32 v6, 7, v7""")
    A("s_lshl_b32 s47, s44, 2")
    for t in range(4):
        A(f"""s_add_u32 s48, s47, {t}
        v_xor_b32 v{8+t}, s48, v6
        v_lshlrev_b32 v{8+t}, 5, v{8+t}
        v_lshl_add_u32 v{8+t}, v7, 10, v{8+t}
        v_lshl_add_u32 v{8+t}, v4, 3, v{8+t}""")
    A("""v_xor_b32 v12, s44, v6
    v_lshlrev_b32 v12, 5, v12
    v_lshl_add_u32 v12, v7, 8, v12
    v_lshl_add_u32 v12, v4, 3, v12""")
    A(f"""v_and_b32 v17, 7, v0
    v_lshlrev_b32 v17, 1, v17
    v_xor_b32 v17, v17, v2
    s_lshl_b32 s47, s44, 13
    s_add_u32 s47, s47, {R1}
    v_lshlrev_b32 v18, 8, v1
    v_add_u32 v18, s47, v18""")
    for c4 in range(4):
        A(f"v_xor_b32 v{13+c4}, {4*c4}, v17\nv_lshl_add_u32 v{13+c4}, v{13+c4}, 4, v18")
    A(f"v_mov_b32 v17, {SC}\nv_mov_b32 v18, 1")
    A(f"""v_bfe_u32 v19, v0, 2, 1
    v_lshlrev_b32 v19, 13, v19
    v_and_b32 v20, 1, v0
    v_lshl_add_u32 v19, v20, 8, v19
    v_bfe_u32 v20, v0, 1, 1
    v_lshl_add_u32 v19, v20, 7, v19
    v_lshl_add_u32 v19, v2, 5, v19
    v_bfe_u32 v21, v0, 3, 1
    v_lshl_add_u32 v19, v21, 4, v19
    s_and_b32 s48, s33, 1
    s_lshl_b32 s47, s48, 4
    s_lshl_b32 s49, s3, 5
    s_add_u32 s47, s47, s49
    s_lshl_b32 s49, s44, 1
    s_add_u32 s47, s47, s49
    s_lshl_b32 s47, s47, 13
    s_lshl_b32 s49, s46, 9
    s_add_u32 s47, s47, s49
    s_add_u32 s47, s47, {WS_A1}
    v_add_u32 v19, s47, v19""")
    A(f"""v_bfe_u32 v20, v0, 1, 2
    v_lshlrev_b32 v20, 14, v20
    v_lshrrev_b32 v22, 5, v0
    v_lshl_add_u32 v20, v22, 13, v20
    v_and_b32 v22, 1, v0
    v_lshl_add_u32 v20, v22, 6, v20
    v_and_b32 v22, 1, v2
    v_lshl_add_u32 v20, v22, 5, v20
    v_lshl_add_u32 v20, v21, 4, v20
    s_lshl_b32 s47, s34, 7
    s_lshl_b32 s49, s48, 6
    s_add_u32 s47, s47, s49
    s_lshl_b32 s49, s44, 3
    s_add_u32 s47, s47, s49
    s_lshl_b32 s47, s47, 13
    s_lshl_b32 s49, s35, 4
    s_add_u32 s49, s49, s46
    s_lshl_b32 s49, s49, 7
    s_add_u32 s47, s47, s49
    s_add_u32 s47, s47, {WS_C}
    v_add_u32 v20, s47, v20""")
    A(f"""v_and_b32 v22, 7, v0
    v_lshlrev_b32 v22, 10, v22
    v_lshl_add_u32 v22, v2, 5, v22
    v_lshl_add_u32 v22, v21, 4, v22
    s_lshl_b32 s47, s2, 13
    s_lshl_b32 s49, s44, 7
    s_add_u32 s47, s47, s49
    s_add_u32 s47, s47, {WS_B}
    v_add_u32 v22, s47, v22""")
    A("""s_waitcnt lgkmcnt(0)
    s_add_u32 s42, s42, 0x7f4a7c15
    s_addc_u32 s43, s43, 0x9e3779b9
    s_barrier
    s_waitcnt vmcnt(0)""")
    for t in range(4):
        for ks in range(2):
            for r in range(4):
                A(f"v_cndmask_b32 v{32+(t*2+ks)*4+r}, 0, v{64+ks*4+r}, s[{20+2*t}:{21+2*t}]")
    def spin(off, need, sleep=spin_sleep):
        l = A.lab("L_sp")
        A(f"""s_mov_b32 s53, 0x400000
        {l}:
        ds_read_b32 v23, v17 offset:{off - SC}
        s_sub_u32 s53, s53, 1
        s_cbranch_scc1 L_end
        s_waitcnt lgkmcnt(0)
        v_readfirstlane_b32 s54, v23
        s_cmp_ge_i32 s54, {need}""")
        if sleep:
            l2 = A.lab("L_sd")
            A(f"s_cbranch_scc1 {l2}\ns_sleep {sleep}\ns_branch {l}\n{l2}:")
        else:
            A(f"s_cbranch_scc0 {l}")
    def bump(off):
        A(f"s_mov_b64 exec, 1\nds_add_u32 v17, v18 offset:{off - SC}\ns_mov_b64 exec, -1")
    def proj_reads(ks, dst):
        for t in range(4):
            for h in range(2):
                A(f"ds_read_b64_tr_b16 v[{dst+t*4+h*2}:{dst+t*4+h*2+1}], v{8+t} offset:{ks*32768+h*16384}")
    def proj_mfma(ks, src, opb, acc):
        for t in range(4):
            if t < 3: A(f"s_waitcnt lgkmcnt({6-2*t})")
            else: A("s_waitcnt lgkmcnt(0)")
            c = "0" if (ks == 0 and t == 0) else f"v[{acc}:{acc+3}]"
            A(f"v_mfma_f32_16x16x32_bf16 v[{acc}:{acc+3}], v[{src+t*4}:{src+t*4+3}], v[{opb+(t*2+ks)*4}:{opb+(t*2+ks)*4+3}], {c}")
    def publish(acc, voff):
        A(f"""v_mov_b32 v30, s42
        v_mov_b32 v31, s43
        s_nop 5
        v_cndmask_b32 v28, v{acc}, v{acc+2}, s[28:29]
        v_cndmask_b32 v29, v{acc+1}, v{acc+3}, s[28:29]
        global_store_dwordx4 {voff}, v[28:31], s[12:13] sc1""")
    def gather(loads, sleep=0):
        l = A.lab("L_g");
        A(f"s_mov_b32 s53, 0x40000\n{l}:")
        for (d, vo, imm) in loads:
            A(f"global_load_dwordx4 v[{d}:{d+3}], {vo}, s[12:13] offset:{imm} sc1")
        A("s_sub_u32 s53, s53, 1\ns_cbranch_scc1 L_end")
        n = len(loads)
        for i, (d, vo, imm) in enumerate(loads):
            A(f"s_waitcnt vmcnt({n-1-i})")
            if i == 0:
                A(f"v_cmp_ne_u64 s[56:57], s[42:43], v[{d+2}:{d+3}]")
            else:
                A(f"v_cmp_ne_u64 vcc, s[42:43], v[{d+2}:{d+3}]\ns_or_b64 s[56:57], s[56:57], vcc")
        A("s_mov_b64 exec, s[56:57]")
        if sleep:
            l2 = A.lab("L_gd")
            A(f"s_cbranch_execz {l2}\ns_sleep {sleep}\ns_branch {l}\n{l2}:")
        else:
            A(f"s_cbranch_execnz {l}")
        A("s_mov_b64 exec, -1")

    spin(L_PROG, 32); proj_reads(0, 64); proj_mfma(0, 64, 32, 24)
    spin(L_PROG, 64); proj_reads(1, 80); proj_mfma(1, 80, 32, 24)
    bump(L_CWQ)
    publish(24, "v19")
    stamp(6)
    A("s_lshl_b32 s47, s44, 3\ns_add_u32 s47, s47, 72")
    spin(L_PROG, "s47")
    for tt in range(2):
        for c4 in range(4):
            A(f"ds_read_b128 v[{96+(tt*4+c4)*4}:{96+(tt*4+c4)*4+3}], v{13+c4} offset:{tt*4096}")
    A("s_waitcnt lgkmcnt(0)")
    bump(L_CK)
    A("s_cmp_lg_u32 s44, 0\ns_cbranch_scc1 L_noA")
    A(f"""s_lshl_b32 s47, s2, 13
    s_add_u32 s47, s47, {WS_A1 + 4096}
    v_lshlrev_b32 v24, 4, v0
    v_add_u32 v25, s47, v24""")
    gather([(32 + 4 * k, "v25", k * 1024 - 4096) for k in range(8)])
    stamp(7)
    for e in range(2):
        A(f"""v_add_f32 v{32+e}, v{32+e}, v{36+e}
        v_add_f32 v{40+e}, v{40+e}, v{44+e}
        v_add_f32 v{48+e}, v{48+e}, v{52+e}
        v_add_f32 v{56+e}, v{56+e}, v{60+e}""")
    for e in range(2):
        A(f"v_add_f32 v{32+e}, v{32+e}, v{40+e}\nv_add_f32 v{48+e}, v{48+e}, v{56+e}")
    for e in range(2):
        A(f"v_add_f32 v{32+e}, v{32+e}, v{48+e}")
    A("""v_mov_b32 v34, v32
    v_mov_b32 v35, v33
    s_nop 1
    v_permlane32_swap_b32 v32, v34
    v_permlane32_swap_b32 v33, v35
    s_nop 1
    v_add_f32 v32, v32, v34
    v_add_f32 v33, v33, v35
    v_cvt_pk_bf16_f32 v28, v32, v33
    s_nop 1
    v_mov_b32_dpp v29, v28 quad_perm:[1,1,3,3] row_mask:0xf bank_mask:0xf""")
    A(f"""v_bfe_u32 v26, v0, 4, 1
    v_lshlrev_b32 v26, 12, v26
    v_lshl_add_u32 v26, v1, 3, v26
    s_lshl_b32 s47, s3, 13
    s_lshl_b32 s49, s33, 7
    s_add_u32 s49, s49, s47
    s_add_u32 s49, s49, {WS_A2}
    v_add_u32 v26, s49, v26
    s_mov_b64 exec, 0x55555555
    global_store_dwordx4 v26, v[28:31], s[12:13] sc1
    s_mov_b64 exec, -1
    s_lshr_b32 s49, s33, 4
    s_lshl_b32 s49, s49, 12
    s_add_u32 s47, s47, s49
    s_add_u32 s47, s47, {WS_A2}
    v_add_u32 v25, s47, v24""")
    gather([(32 + 4 * k, "v25", k * 1024) for k in range(4)])
    A(f"""v_lshrrev_b32 v24, 5, v0
    v_mul_u32_u24 v24, 272, v24
    v_and_b32 v25, 31, v0
    v_lshl_add_u32 v24, v25, 3, v24
    v_add_u32 v24, {L_Q}, v24""")
    for k in range(4):
        A(f"ds_write_b64 v24, v[{32+4*k}:{33+4*k}] offset:{k*544}")
    bump(L_FQ)
    stamp(8)
    A("L_noA:")
    A(f"""v_and_b32 v5, 7, v0
    v_mul_u32_u24 v24, 272, v5
    v_lshl_add_u32 v24, v2, 4, v24
    v_add_u32 v24, {L_Q}, v24""")
    spin(L_FQ, 1)
    for c4 in range(4):
        A(f"ds_read_b128 v[{32+4*c4}:{35+4*c4}], v24 offset:{c4*64}")
    for c4 in range(4):
        A(f"s_waitcnt lgkmcnt({3-c4})")
        for tt in range(2):
            c = "0" if c4 == 0 else f"v[{48+4*tt}:{51+4*tt}]"
            A(f"v_mfma_f32_16x16x32_bf16 v[{48+4*tt}:{51+4*tt}], v[{96+(tt*4+c4)*4}:{96+(tt*4+c4)*4+3}], v[{32+4*c4}:{35+4*c4}], {c}")
    cscale = (128 ** -0.5) * math.log2(math.e)
    import struct
    cbits = struct.unpack("<I", struct.pack("<f", cscale))[0]
    A(f"""s_mov_b32 s47, {hex(cbits)}
    v_lshlrev_b32 v25, 5, v5
    v_add_u32 v25, {L_MX}, v25
    s_lshl_b32 s49, s44, 2
    v_add_u32 v26, s49, v25
    s_nop 3""")
    for r in range(4):
        A(f"v_cndmask_b32 v{48+r}, v{48+r}, v{52+r}, s[28:29]")
    for r in range(4):
        A(f"v_mul_f32 v{48+r}, s47, v{48+r}")
    def xreduce(op, v, t):
        A(f"""s_nop 1
        {op}_dpp v{v}, v{v}, v{v} row_ror:8 row_mask:0xf bank_mask:0xf
        v_mov_b32 v{t}, v{v}
        s_nop 1
        v_permlane16_swap_b32 v{v}, v{t}
        s_nop 1
        {op} v{v}, v{v}, v{t}
        v_mov_b32 v{t}, v{v}
        s_nop 1
        v_permlane32_swap_b32 v{v}, v{t}
        s_nop 1
        {op} v{v}, v{v}, v{t}""")
    A("v_max3_f32 v52, v48, v49, v50\nv_max_f32 v52, v52, v51")
    xreduce("v_max_f32", 52, 53)
    A("s_mov_b64 exec, 0xff\nds_write_b32 v26, v52\ns_mov_b64 exec, 1")
    A(f"ds_add_u32 v17, v18 offset:{L_CMX - SC}\ns_mov_b64 exec, -1")
    spin(L_CMX, 8, sleep=0)
    A("""ds_read_b128 v[56:59], v25
    ds_read_b128 v[60:63], v25 offset:16
    s_waitcnt lgkmcnt(0)
    v_max3_f32 v52, v56, v57, v58
    v_max3_f32 v53, v59, v60, v61
    v_max3_f32 v52, v52, v62, v63
    v_max_f32 v52, v52, v53""")
    for r in range(4):
        A(f"v_sub_f32 v{48+r}, v{48+r}, v52")
    for r in range(4):
        A(f"v_exp_f32 v{48+r}, v{48+r}")
    A(f"""v_lshlrev_b32 v24, 7, v2
    v_lshl_add_u32 v24, v5, 4, v24
    v_add_u32 v24, {L_P}, v24
    s_lshl_b32 s49, s44, 9
    v_lshl_add_u32 v56, v21, 3, v24
    v_add_u32 v56, s49, v56
    v_cvt_pk_bf16_f32 v54, v48, v49
    v_cvt_pk_bf16_f32 v55, v50, v51
    ds_write_b64 v56, v[54:55]
    v_add_f32 v48, v48, v49
    v_add_f32 v50, v50, v51
    v_add_f32 v48, v48, v50""")
    xreduce("v_add_f32", 48, 49)
    A(f"s_mov_b64 exec, 0xff\nds_write_b32 v26, v48 offset:{L_LS - L_MX}\ns_mov_b64 exec, 1")
    A(f"ds_add_u32 v17, v18 offset:{L_CP - SC}\ns_mov_b64 exec, -1")
    spin(L_CP, 8, sleep=0)
    for c8 in range(8):
        A(f"ds_read_b128 v[{96+4*c8}:{99+4*c8}], v24 offset:{c8*512}")
    stamp(9)
    A("s_cmp_lg_u32 s44, 7\ns_cbranch_scc1 L_noML")
    A(f"""ds_read_b128 v[56:59], v25 offset:{L_LS - L_MX}
    ds_read_b128 v[60:63], v25 offset:{L_LS - L_MX + 16}
    s_lshl_b32 s47, s2, 7
    s_add_u32 s47, s47, {WS_ML}
    v_lshlrev_b32 v26, 4, v0
    v_add_u32 v26, s47, v26
    v_mov_b32 v28, v52
    s_waitcnt lgkmcnt(0)
    v_add_f32 v56, v56, v57
    v_add_f32 v58, v58, v59
    v_add_f32 v60, v60, v61
    v_add_f32 v62, v62, v63
    v_add_f32 v56, v56, v58
    v_add_f32 v60, v60, v62
    v_add_f32 v29, v56, v60
    s_mov_b64 exec, 0xff
    global_store_dwordx4 v26, v[28:31], s[12:13] sc1
    s_mov_b64 exec, -1
    L_noML:""")
    steps = [(0, 4), (4, 6), (6, 7), (7, 8)]
    for (a, b) in steps:
        spin(L_PROG, 128 + 8 * b, sleep=(spin_sleep if b < 8 else 0))
        for c8 in range(a, b):
            for h in range(2):
                d = 64 + (c8 & 3) * 4 + h * 2
                A(f"ds_read_b64_tr_b16 v[{d}:{d+1}], v12 offset:{c8*8192+h*4096}")
        for c8 in range(a, b):
            A(f"s_waitcnt lgkmcnt({2*(b-1-c8)})")
            c = "0" if c8 == 0 else "v[24:27]"
            d = 64 + (c8 & 3) * 4
            A(f"v_mfma_f32_16x16x32_bf16 v[24:27], v[{d}:{d+3}], v[{96+4*c8}:{99+4*c8}], {c}")
    publish(24, "v22")
    stamp(10)
    A(f"""v_lshrrev_b32 v24, 3, v0
    v_lshlrev_b32 v25, 13, v24
    v_lshl_add_u32 v25, v5, 4, v25
    s_and_b32 s47, s44, 1
    s_lshl_b32 s47, s47, 4
    s_lshl_b32 s49, s3, 5
    s_add_u32 s47, s47, s49
    s_lshr_b32 s50, s33, 2
    s_lshl_b32 s49, s47, 13
    s_lshl_b32 s51, s50, 10
    s_add_u32 s49, s49, s51
    s_and_b32 s51, s46, 1
    s_lshl_b32 s51, s51, 9
    s_add_u32 s49, s49, s51
    s_lshr_b32 s51, s44, 1
    s_lshl_b32 s51, s51, 7
    s_add_u32 s49, s49, s51
    s_add_u32 s49, s49, {WS_B}
    v_add_u32 v25, s49, v25
    v_add_u32 v26, 0x10000, v25
    s_lshl_b32 s47, s47, 7
    s_lshl_b32 s50, s50, 4
    s_add_u32 s47, s47, s50
    s_add_u32 s47, s47, {WS_ML}
    v_lshlrev_b32 v24, 7, v24
    v_add_u32 v24, s47, v24""")
    gather([(32, "v24", 0), (36, "v24", 1024), (40, "v25", 0), (44, "v26", 0)])
    stamp(11)
    A("v_max_f32 v48, v32, v36")
    xreduce("v_max_f32", 48, 49)
    A("""v_sub_f32 v32, v32, v48
    v_sub_f32 v36, v36, v48
    v_exp_f32 v32, v32
    v_exp_f32 v36, v36
    s_nop 0
    v_mul_f32 v33, v33, v32
    v_mul_f32 v40, v40, v32
    v_mul_f32 v41, v41, v32
    v_fmac_f32 v33, v37, v36
    v_fmac_f32 v40, v44, v36
    v_fmac_f32 v41, v45, v36""")
    xreduce("v_add_f32", 33, 49); xreduce("v_add_f32", 40, 50); xreduce("v_add_f32", 41, 51)
    A(f"""v_rcp_f32 v33, v33
    v_bfe_u32 v24, v0, 1, 2
    v_lshlrev_b32 v24, 4, v24
    v_and_b32 v25, 1, v0
    v_lshl_add_u32 v24, v25, 2, v24
    s_and_b32 s47, s44, 1
    s_lshl_b32 s47, s47, 7
    s_lshr_b32 s49, s44, 2
    s_lshl_b32 s49, s49, 6
    s_add_u32 s47, s47, s49
    s_and_b32 s49, s44, 2
    s_lshl_b32 s49, s49, 2
    s_add_u32 s47, s47, s49
    s_add_u32 s47, s47, {L_O}
    v_add_u32 v24, s47, v24
    v_mul_f32 v40, v40, v33
    v_mul_f32 v41, v41, v33
    v_cvt_pk_bf16_f32 v40, v40, v41
    s_mov_b64 exec, 0xff
    ds_write_b32 v24, v40
    s_mov_b64 exec, 1
    ds_add_u32 v17, v18 offset:{L_CO - SC}
    s_mov_b64 exec, -1""")
    A(f"""v_lshlrev_b32 v24, 7, v25
    v_lshl_add_u32 v24, v2, 4, v24
    v_add_u32 v24, {L_O}, v24
    v_mov_b32 v25, {L_ZERO}""")
    for t in range(4):
        A(f"v_cndmask_b32 v{13+t}, v25, v24, s[{20+2*t}:{21+2*t}]\nv_add_u32 v{8+t}, {R1}, v{8+t}")
    spin(L_CO, 8, sleep=0)
    for t in range(4):
        for ks in range(2):
            d = 32 + (t * 2 + ks) * 4
            A(f"ds_read_b128 v[{d}:{d+3}], v{13+t} offset:{ks*64}")
    stamp(12)
    spin(L_PROG, 224); proj_reads(0, 64); proj_mfma(0, 64, 32, 24)
    spin(L_PROG, 256, sleep=0); proj_reads(1, 80); proj_mfma(1, 80, 32, 24)
    publish(24, "v20")
    stamp(13)
    A("s_cmp_lg_u32 s44, 0\ns_cbranch_scc1 L_end")
    A(f"""s_lshl_b32 s47, s2, 13
    s_add_u32 s47, s47, {WS_C + 4096}
    v_lshlrev_b32 v24, 4, v0
    v_add_u32 v25, s47, v24""")
    gather([(32 + 4 * k, "v25", k * 1024 - 4096) for k in range(8)])
    stamp(14)
    for e in range(2):
        A(f"""v_add_f32 v{32+e}, v{32+e}, v{36+e}
        v_add_f32 v{40+e}, v{40+e}, v{44+e}
        v_add_f32 v{48+e}, v{48+e}, v{52+e}
        v_add_f32 v{56+e}, v{56+e}, v{60+e}""")
    for e in range(2):
        A(f"v_add_f32 v{32+e}, v{32+e}, v{40+e}\nv_add_f32 v{48+e}, v{48+e}, v{56+e}")
    for e in range(2):
        A(f"v_add_f32 v{32+e}, v{32+e}, v{48+e}")
    xreduce("v_add_f32", 32, 34); xreduce("v_add_f32", 33, 35)
    A("""v_cvt_pk_bf16_f32 v32, v32, v33
    v_bfe_u32 v24, v0, 2, 1
    v_lshlrev_b32 v24, 12, v24
    v_lshl_add_u32 v24, v4, 2, v24
    s_lshl_b32 s47, s2, 4
    v_add_u32 v24, s47, v24
    s_mov_b64 exec, 0xff
    global_store_dword v24, v32, s[40:41]
    s_and_b32 s47, s2, 127
    s_cmp_lg_u32 s47, 0
    s_cbranch_scc1 L_noep
    s_mov_b64 exec, 1
    v_mov_b32 v24, s45
    global_store_dwordx2 v24, v[30:31], s[12:13]
    L_noep:""")
    stamp(15)
    diagspin(6, 15)
    if stamps:
        A(f"""s_mov_b64 exec, 1
        s_waitcnt lgkmcnt(0)
        s_mul_i32 s54, s2, {NST*2*8}
        s_add_u32 s54, s54, {WS_STAMP}
        s_add_u32 s12, s12, s54
        s_addc_u32 s13, s13, 0
        v_mov_b32 v1, 0
        v_mov_b32 v3, 0""")
        for i in range(6, 16):
            A(f"v_mov_b32 v2, s{64+2*i}\nglobal_store_dwordx2 v1, v[2:3], s[12:13] offset:{i*8}\ns_nop 1")
    A("L_end:\ns_endpgm")
    A(f""".section .rodata,"a"
    .p2align 6
    .amdhsa_kernel {KN}
    .amdhsa_next_free_vgpr 128
    .amdhsa_next_free_sgpr 102
    .amdhsa_accum_offset 128
    .amdhsa_group_segment_fixed_size 0
    .amdhsa_kernarg_size 104
    .amdhsa_user_sgpr_count 2
    .amdhsa_user_sgpr_kernarg_segment_ptr 1
    .amdhsa_system_sgpr_workgroup_id_x 1
    .amdhsa_float_denorm_mode_32 3
    .end_amdhsa_kernel""")
    return "\n".join(out + A.L) + "\n"

if __name__ == "__main__":
    import argparse
    ap = argparse.ArgumentParser()
    ap.add_argument("-o", default="concat_heads__sliding_block_cached__sliding_block_cached__decode.s")
    ap.add_argument("--depth", type=int, default=24)
    ap.add_argument("--nont", action="store_true")
    ap.add_argument("--stamps", action="store_true")
    ap.add_argument("--diag", type=int, default=-1)
    ap.add_argument("--diagwg", type=int, default=-1)
    ap.add_argument("--diagt", type=int, default=4000)
    a = ap.parse_args()
    open(a.o, "w").write(gen(depth=a.depth, nt=not a.nont, stamps=a.stamps, diag=a.diag, diagwg=a.diagwg, diagt=a.diagt))
```
